```python
import torch

def _softmax(x, axis=-1):
    return torch.softmax(x, dim=axis)
def _gelu(x):
    return torch.nn.functional.gelu(x, approximate="tanh")
def _silu(x):
    return torch.nn.functional.silu(x)
def _sigmoid(x):
    return torch.sigmoid(x)
def _layernorm(x, axis=-1, eps=1e-5):
    m = x.mean(dim=axis, keepdim=True)
    v = x.var(dim=axis, keepdim=True, unbiased=False)
    return (x - m) / torch.sqrt(v + eps)
def _scatter_add(tgt, idx, src, axis=0):
    return tgt.clone().index_add_(axis, idx, src)
def _segment_sum(src, seg, n):
    out = torch.zeros((n,) + src.shape[1:], dtype=src.dtype)
    return out.index_add_(0, seg, src)
def _pad(x, pw):
    flat = tuple(v for pair in reversed(pw) for v in pair)
    return torch.nn.functional.pad(x, flat)

kernel_name = 'standalone__gqa_softmax__near_ridge'

def setup_inputs():

    _w = (lambda a: (lambda t: t.to(torch.bfloat16) if t.is_floating_point() else t)(torch.as_tensor(a)))
    B, Hq, Hkv, Sq, Sk, D = 16, 32, 32, 848, 512, 192
    return {
        "q": _w((lambda *s: torch.randn(*s, dtype=torch.bfloat16) * 0.8)(B, Hq, Sq, D)),
        "k": _w((lambda *s: torch.randn(*s, dtype=torch.bfloat16) * 0.8)(B, Hkv, Sk, D)),
        "v": _w((lambda *s: torch.randn(*s, dtype=torch.bfloat16) * 0.05)(B, Hkv, Sk, D)),
    }

def reference(q, k, v):
    B, Hq, Sq, D = q.shape
    Hkv = k.shape[1]
    rep = Hq // Hkv
    k = (lambda x, n, axis: torch.repeat_interleave(x, n, dim=axis))(k, rep, axis=1)
    v = (lambda x, n, axis: torch.repeat_interleave(x, n, dim=axis))(v, rep, axis=1)
    scale = D ** -0.5
    scores = torch.einsum("bhqd,bhkd->bhqk", q, k) * scale
    p = _softmax(scores, axis=-1)
    return torch.einsum("bhqk,bhkd->bhqd", p, v)
```

```python
import re

REG_RE = re.compile(r'^(-|abs\()?([vas])(\d+)\)?$')
RANGE_RE = re.compile(r'^(-)?([vas])\[(\d+):(\d+)\]$')


def regs_of(op):
    op = op.strip()
    m = RANGE_RE.match(op)
    if m:
        return [(m.group(2), i) for i in range(int(m.group(3)), int(m.group(4)) + 1)]
    m = REG_RE.match(op)
    if m:
        return [(m.group(2), int(m.group(3)))]
    if op in ('vcc', 'exec', 'm0', 'scc'):
        return [(op, 0)]
    if op in ('vcc_lo', 'vcc_hi'):
        return [('vcc', 0)]
    if op in ('exec_lo', 'exec_hi'):
        return [('exec', 0)]
    return []


TRANS = ('v_exp_f32', 'v_rcp_f32', 'v_log_f32', 'v_rsq_f32', 'v_sqrt_f32')
SWAPS = ('v_permlane16_swap_b32', 'v_permlane32_swap_b32')
RMW = ('v_fmac_f32',)


class Inst:
    __slots__ = ('text', 'op', 'kind', 'reads', 'writes', 'tag', 'prio', 'notbefore', 'deps', 'idx', 'after',
                 'lat', 'vm_id', 'srcc', 'srcab', 'note', 'floating')

    def __init__(self, text, tag=None, prio=0.0, notbefore=0, vm_id=None):
        self.text = text
        self.tag = tag
        self.prio = prio
        self.notbefore = notbefore
        self.vm_id = vm_id
        self.after = []
        self.srcc = set()
        self.srcab = set()
        self.floating = False
        self.parse()

    def parse(self):
        t = self.text.split('\n')[0].split(';')[0].strip()
        t = re.sub(r'\s+op_sel(_hi)?:\[[01,]*\]', '', t)
        t = re.sub(r'\s+offset[01]:\d+', '', t)
        parts = t.split(None, 1)
        op = parts[0]
        self.op = op
        rest = parts[1] if len(parts) > 1 else ''
        ops = [x.strip() for x in rest.split(',')] if rest else []
        last_mods = ''
        if ops:
            sp = ops[-1].split(None, 1)
            if op.startswith('s_waitcnt') or op.startswith('s_nop') or op.startswith('s_cbranch') or op.startswith('s_branch') or op == 's_call_b64':
                pass
            elif len(sp) > 1:
                ops[-1] = sp[0]
                last_mods = sp[1]
        R = set()
        W = set()
        base = op.replace('_e32', '').replace('_e64', '').replace('_dpp', '')
        if op.endswith(':'):
            self.kind = 'label'
        elif op.startswith('v_mfma'):
            self.kind = 'mfma'
            W |= set(regs_of(ops[0]))
            self.srcab = set(regs_of(ops[1])) | set(regs_of(ops[2]))
            self.srcc = set(regs_of(ops[3]))
            R |= self.srcab | self.srcc
        elif op.startswith('ds_read'):
            self.kind = 'ds'
            W |= set(regs_of(ops[0]))
            R |= set(regs_of(ops[1]))
        elif op.startswith('ds_write'):
            self.kind = 'ds'
            for o in ops:
                R |= set(regs_of(o))
        elif op.startswith('buffer_load'):
            mods = last_mods.split()
            if 'lds' in mods:
                self.kind = 'dma'
                for o in ops:
                    R |= set(regs_of(o))
                R.add(('m0', 0))
            else:
                self.kind = 'vld'
                W |= set(regs_of(ops[0]))
                for o in ops[1:]:
                    R |= set(regs_of(o))
        elif op.startswith('buffer_store'):
            self.kind = 'vst'
            ops = [o for o in ops if o != 'off']
            for o in ops:
                R |= set(regs_of(o))
        elif op.startswith('v_cmp'):
            self.kind = 'valu'
            W |= set(regs_of(ops[0]))
            for o in ops[1:]:
                R |= set(regs_of(o))
        elif base in SWAPS:
            self.kind = 'valu'
            for o in ops[:2]:
                R |= set(regs_of(o))
                W |= set(regs_of(o))
        elif op.startswith('v_readfirstlane') or op.startswith('v_readlane'):
            self.kind = 'valu'
            W |= set(regs_of(ops[0]))
            for o in ops[1:]:
                R |= set(regs_of(o))
        elif op.startswith('v_'):
            self.kind = 'trans' if base in TRANS else 'valu'
            W |= set(regs_of(ops[0]))
            start = 1
            if base in ('v_add_co_u32', 'v_addc_co_u32', 'v_sub_co_u32'):
                W |= set(regs_of(ops[1]))
                start = 2
            for o in ops[start:]:
                R |= set(regs_of(o))
            if base in RMW or 'DPPMERGE' in self.text:
                R |= set(regs_of(ops[0]))
            if base == 'v_cndmask_b32' and len(ops) == 3:
                R.add(('vcc', 0))
        elif op == 's_waitcnt':
            self.kind = 'wait'
        elif op == 's_nop':
            self.kind = 'nop'
        elif op == 's_barrier':
            self.kind = 'barrier'
        elif op.startswith('s_cbranch') or op in ('s_branch', 's_call_b64', 's_setpc_b64'):
            self.kind = 'branch'
            if 'vcc' in op:
                R.add(('vcc', 0))
            if 'scc' in op:
                R.add(('scc', 0))
            if 'exec' in op:
                R.add(('exec', 0))
        elif op == 's_endpgm' or op == 's_setprio' or op == 's_sleep':
            self.kind = 'misc'
        elif op.startswith('s_load') or op.startswith('s_memtime') or op.startswith('s_memrealtime'):
            self.kind = 'smem'
            W |= set(regs_of(ops[0]))
            for o in ops[1:]:
                R |= set(regs_of(o))
        elif op.startswith('s_cmp') or op.startswith('s_bitcmp'):
            self.kind = 'salu'
            for o in ops:
                R |= set(regs_of(o))
            W.add(('scc', 0))
        elif op.startswith('s_'):
            self.kind = 'salu'
            W |= set(regs_of(ops[0]))
            for o in ops[1:]:
                R |= set(regs_of(o))
            if base in ('s_add_u32', 's_sub_u32', 's_addc_u32', 's_subb_u32', 's_and_b32', 's_or_b32', 's_xor_b32',
                        's_lshl_b32', 's_lshr_b32', 's_and_b64', 's_or_b64', 's_add_i32', 's_sub_i32', 's_min_u32',
                        's_max_u32', 's_and_saveexec_b64', 's_andn2_b64', 's_addk_i32'):
                W.add(('scc', 0))
            if base in ('s_addc_u32', 's_subb_u32', 's_cselect_b32', 's_cselect_b64'):
                R.add(('scc', 0))
            if base == 's_addk_i32':
                R |= set(regs_of(ops[0]))
            if base == 's_and_saveexec_b64':
                W.add(('exec', 0))
                R.add(('exec', 0))
        elif op.startswith('.'):
            self.kind = 'directive'
        else:
            raise ValueError('unknown instruction: ' + self.text)
        self.reads = R
        self.writes = W

    def __repr__(self):
        return self.text


VEC_VALU = ('valu', 'trans', 'mfma')
MEM = ('ds', 'dma', 'vld', 'vst')
SCALAR = ('salu', 'wait', 'nop', 'barrier', 'branch', 'misc', 'smem')


def is_vreg(r):
    return r[0] in ('v', 'a')


def need_states(p, c):
    n = 0
    if p.kind == 'mfma':
        d = p.writes
        if c.kind == 'mfma':
            if c.srcab & d:
                n = max(n, 8)
            if c.srcc & d:
                if c.srcc != d:
                    n = max(n, 6)
            if (c.writes & d) and c.writes != d:
                n = max(n, 6)
        elif c.kind in ('valu', 'trans'):
            if (c.reads & d) or (c.writes & d):
                n = max(n, 8)
            if c.writes & p.srcc:
                n = max(n, 3)
        elif c.kind in MEM:
            if (c.reads & d) or (c.writes & d):
                n = max(n, 8)
    elif p.kind in ('valu', 'trans'):
        vw = {r for r in p.writes if is_vreg(r)}
        sw = p.writes - vw
        if c.kind == 'mfma' and (c.reads & vw):
            n = max(n, 2)
        if p.kind == 'trans' and c.kind in ('valu', 'trans', 'mfma') + MEM and (c.reads & vw):
            n = max(n, 1)
        if 'op_sel' in p.text and c.kind in ('valu', 'trans', 'mfma') + MEM and ((c.reads | c.writes) & vw):
            n = max(n, 1)
        if p.op.startswith('v_pk_') and c.kind == 'mfma':
            n = max(n, 2)
        cb = c.op.replace('_e32', '')
        if cb in SWAPS and (c.reads & vw):
            n = max(n, 2)
        if (c.op.startswith('v_readfirstlane') or c.op.startswith('v_readlane')) and (c.reads & vw):
            n = max(n, 1)
        if 'row_' in c.text and (c.reads & vw):
            n = max(n, 2)
        if sw:
            if c.kind in ('valu', 'trans') and (c.reads & sw):
                n = max(n, 2)
            if c.kind in ('dma', 'vld', 'vst') and (c.reads & sw):
                n = max(n, 5)
            if c.kind == 'branch' and (c.reads & sw):
                n = max(n, 5)
            if c.kind == 'salu' and (c.reads & sw):
                n = max(n, 4)
    elif p.kind == 'vst':
        if p.op.endswith('x4') or p.op.endswith('x3'):
            data = {r for r in p.reads if is_vreg(r)}
            if c.kind in ('valu', 'trans') and (c.writes & data):
                n = max(n, 2)
            elif c.writes & data:
                n = max(n, 1)
    elif p.kind == 'salu':
        if ('m0', 0) in p.writes and c.kind == 'dma':
            n = max(n, 1)
    return n


def states_of(i):
    if i.kind == 'nop':
        return int(i.text.split()[1]) + 1
    if i.kind in ('label', 'directive'):
        return 0
    return 1


MAX_STATES = 8


def check_hazards(seq, name=''):
    bad = []
    for j, c in enumerate(seq):
        if c.kind in ('label', 'directive', 'wait', 'nop', 'barrier'):
            continue
        dist = 0
        k = j - 1
        while k >= 0 and dist < MAX_STATES:
            p = seq[k]
            n = need_states(p, c)
            if n > dist:
                bad.append((name, k, p.text, j, c.text, n, dist))
            dist += states_of(p)
            k -= 1
    return bad


def fix_hazards(seq, history=()):
    out = []
    hist = list(history)[-24:]
    for c in seq:
        if c.kind not in ('label', 'directive', 'wait', 'nop', 'barrier'):
            ctx = hist + out[-24:]
            dist = 0
            need = 0
            k = len(ctx) - 1
            while k >= 0 and dist < MAX_STATES:
                n = need_states(ctx[k], c)
                need = max(need, n - dist)
                dist += states_of(ctx[k])
                k -= 1
            if need > 0:
                out.append(Inst('s_nop %d' % (need - 1)))
        out.append(c)
    return out


LDS_LAT = 160
LDSW = 12
STGAP = 120
WAIT_LAT = 160


def issue_time(prev_kind, prev_t, c, st):
    t = st['slot']
    k = c.kind
    if k in VEC_VALU:
        t = max(t, st['vec_free'])
        if c.op.startswith('v_pk_'):
            t = max(t, st['mfma_free'] + 12)
        if k == 'mfma':
            t = max(t, st['mfma_free'])
    elif k in MEM:
        t = max(t, st['vec_free'] if k == 'ds' else st['vmem_free'])
        if k == 'ds':
            t = max(t, st['ldsw_free'] if c.op.startswith('ds_write') else st['ldsw_free'] - LDSW + 8)
        if k == 'vst':
            t = max(t, st['st_free'])
        if st['last_valu_end'] is not None:
            t = max(t, st['last_valu_end'] + 8)
    return t


def commit(c, t, st):
    k = c.kind
    dur = 4 * states_of(c) if k == 'nop' else 4
    st['slot'] = t + dur
    st['last_kind'] = k
    if k == 'mfma':
        st['vec_by_mfma'] = True
    elif k not in SCALAR:
        st['vec_by_mfma'] = False
    if k == 'mfma':
        st['vec_free'] = t + 8
        st['vmem_free'] = max(st['vmem_free'], t + 8)
        st['mfma_free'] = t + 16
    elif k == 'valu':
        d = 8 if c.op.replace('_e32', '') in SWAPS else 4
        st['vec_free'] = t + d
        st['last_valu_end'] = t + d
    elif k == 'trans':
        st['vec_free'] = t + 8
        st['last_valu_end'] = t + 8
    elif k == 'ds':
        dur = 4
        if c.op.startswith('ds_write'):
            st['ldsw_free'] = t + LDSW
            dur = 12 if c.op == 'ds_write_b64' else 20
        st['vec_free'] = t + dur
        st['vmem_free'] = max(st['vmem_free'], t + 4)
    elif k in MEM:
        if k == 'vst':
            st['st_free'] = t + STGAP
        st['vec_free'] = t + 12
        st['vmem_free'] = t + 8


def new_state():
    return dict(slot=0, vec_free=0, mfma_free=-100, last_valu_end=None, vmem_free=0, last_kind=None, vec_by_mfma=False, ldsw_free=0, st_free=0)


def estimate(seq):
    st = new_state()
    t = 0
    for c in seq:
        if c.kind in ('label', 'directive'):
            continue
        t = issue_time(None, None, c, st)
        commit(c, t, st)
    return max(st['slot'], st['mfma_free'])


def build_deps(prog):
    last_w = {}
    readers = {}
    for i, c in enumerate(prog):
        c.idx = i
        deps = {}

        def add(j, lat):
            deps[j] = max(deps.get(j, 0), lat)
        for r in c.reads:
            if r in last_w:
                p = prog[last_w[r]]
                lat = 4
                if p.kind == 'mfma':
                    lat = 16 if (c.kind == 'mfma' and r in c.srcc and c.srcc == p.writes) else 40
                elif p.kind == 'ds':
                    lat = LDS_LAT
                elif p.kind == 'trans':
                    lat = 12
                elif p.kind == 'valu' and c.kind == 'mfma':
                    lat = 12
                add(last_w[r], lat)
        for r in c.writes:
            if r in last_w:
                p = prog[last_w[r]]
                add(last_w[r], 40 if (p.kind == 'mfma' and c.kind != 'mfma') else 4)
            for j in readers.get(r, ()):
                p = prog[j]
                add(j, 16 if (p.kind == 'mfma' and r in p.srcc and c.kind != 'mfma') else 4)
        for a in c.after:
            add(a.idx, 4)
        for r in c.reads:
            readers.setdefault(r, []).append(i)
        for r in c.writes:
            last_w[r] = i
            readers[r] = []
        deps.pop(i, None)
        c.deps = deps


def schedule(prog, history=(), ds_chain=False, verbose=False, urgent_ok=True, jitter=None):
    lastm = lastds = lastvm = lastst = None
    for c in prog:
        if c.kind == 'mfma':
            if c.floating:
                continue
            if lastm is not None:
                c.after.append(lastm)
            lastm = c
        elif c.kind == 'ds' and ds_chain:
            if lastds is not None:
                c.after.append(lastds)
            lastds = c
        elif c.kind in ('dma', 'vld'):
            if lastvm is not None:
                c.after.append(lastvm)
            lastvm = c
        elif c.kind == 'vst':
            if lastst is not None:
                c.after.append(lastst)
            lastst = c
    build_deps(prog)
    n = len(prog)
    succ = [[] for _ in range(n)]
    for c in prog:
        for j, lat in c.deps.items():
            succ[j].append((c.idx, lat))
    def dur(c):
        if c.kind == 'mfma':
            return 16
        if c.kind == 'trans' or c.op.replace('_e32', '') in SWAPS:
            return 8
        return 4
    nm = sum(1 for c in prog if c.kind == 'mfma')
    tail = [0] * n
    for c in reversed(prog):
        best = dur(c)
        for (s, lat) in succ[c.idx]:
            l = lat
            if c.kind == 'mfma' and prog[s].kind == 'mfma':
                l = max(l, 16)
            best = max(best, l + tail[s])
        tail[c.idx] = best
    horizon = max(tail) if tail else 0
    latest = [horizon - tail[i] for i in range(n)]
    if jitter is not None:
        rng, amp = jitter
        cls = {k: rng.uniform(-amp, amp) for k in ('valu', 'trans', 'ds')}
        latest = [latest[i] + cls.get(prog[i].kind, 0) + rng.uniform(-amp, amp) * 0.5 for i in range(n)]
    done_t = [None] * n
    mlist = [c for c in prog if c.kind == 'mfma' and not c.floating]
    remaining = set(range(n))
    npred = [len(c.deps) for c in prog]
    ready = [i for i in range(n) if npred[i] == 0]
    st = new_state()
    out = []
    ctx = list(history)[-24:]

    def states_ok(c):
        dist = 0
        need = 0
        seq = ctx
        k = len(seq) - 1
        while k >= 0 and dist < MAX_STATES:
            nn = need_states(seq[k], c)
            need = max(need, nn - dist)
            dist += states_of(seq[k])
            k -= 1
        return need

    def ready_time(c):
        t = c.notbefore
        for j, lat in c.deps.items():
            t = max(t, done_t[j] + lat)
        return t

    while remaining:
        cands = []
        for i in ready:
            c = prog[i]
            t0 = issue_time(None, None, c, st)
            t = max(t0, ready_time(c))
            cands.append((i, c, t, states_ok(c)))
        mf = [x for x in cands if x[1].kind == 'mfma']
        now = st['slot']
        fl = [x for x in mf if x[1].floating and x[3] == 0 and x[2] <= max(st['mfma_free'], st['vec_free'], now)]
        ch = [x for x in mf if not x[1].floating]
        if fl:
            mf = fl[:1]
        elif ch:
            mf = ch[:1]
        else:
            mf = sorted(mf, key=lambda x: (x[3], x[2]))[:1]
        pick = None
        if mf:
            i, c, tm, need = mf[0]
            if need == 0:
                best = None
                after_mfma = st['last_kind'] == 'mfma'
                for (j, d, t, nd) in cands:
                    if d.kind == 'mfma' or nd > 0:
                        continue
                    scal = d.kind in SCALAR
                    if scal and after_mfma and t <= now:
                        key = (-1, latest[j] + d.prio, t, j)
                        if best is None or key < best[0]:
                            best = (key, (j, d, t, nd))
                        continue
                    if scal and not after_mfma and latest[j] + d.prio > now + 64:
                        continue
                    if t > tm - 4 and t > now + 12:
                        continue
                    if d.kind in ('dma', 'vld', 'vst'):
                        if st['vec_by_mfma'] and ready_time(d) <= now + 8:
                            key = (-0.5, latest[j] + d.prio, t, j)
                            if best is None or key < best[0]:
                                best = (key, (j, d, t, nd))
                            continue
                        if not now > ready_time(d) + 160:
                            continue
                    st2 = dict(st)
                    commit(d, t, st2)
                    tm2 = max(issue_time(None, None, c, st2), ready_time(c))
                    delay = tm2 - tm
                    urgent = latest[j] + d.prio < tm - 16 * URGENT and (urgent_ok or d.prio <= -40000)
                    if delay <= 0 or (urgent and delay <= 12):
                        key = (0 if delay <= 0 else 1, latest[j] + d.prio, t, j)
                        if best is None or key < best[0]:
                            best = (key, (j, d, t, nd))
                pick = best[1] if best else mf[0]
                if FILL_LOOKAHEAD and best and st['vec_by_mfma'] and pick[1].kind in ('valu', 'ds') and pick[1].op.replace('_e32', '') not in SWAPS:
                    def second_exists(first):
                        st2 = dict(st)
                        commit(first[1], first[2], st2)
                        for (j2, d2, t2, nd2) in cands:
                            if d2.kind not in ('valu', 'ds') or nd2 > 0 or j2 == first[0]:
                                continue
                            t3 = max(issue_time(None, None, d2, st2), ready_time(d2))
                            st3 = dict(st2)
                            commit(d2, t3, st3)
                            if max(issue_time(None, None, c, st3), ready_time(c)) - tm <= 0:
                                return True
                        for (sx, lat) in succ[first[0]]:
                            d2 = prog[sx]
                            if npred[sx] == 1 and d2.kind == 'valu' and lat <= 4:
                                return True
                        return False
                    if not second_exists(pick) and latest[pick[0]] + pick[1].prio > now + FILL_SLACK:
                        alts = []
                        for x in cands:
                            j, d, t, nd = x
                            if nd > 0 or j == pick[0] or d.kind not in ('trans', 'valu', 'ds'):
                                continue
                            st2 = dict(st)
                            commit(d, t, st2)
                            if max(issue_time(None, None, c, st2), ready_time(c)) - tm > 0:
                                continue
                            if d.kind == 'trans' or second_exists(x):
                                alts.append((latest[j] + d.prio, j, x))
                        if alts:
                            pick = min(alts)[2]
            else:
                others = [x for x in cands if x[1].kind != 'mfma' and x[3] == 0]
                if others:
                    pick = min(others, key=lambda x: (x[2] > now + 8, latest[x[0]] + x[1].prio, x[2], x[0]))
                else:
                    nop = Inst('s_nop %d' % (need - 1))
                    t = st['slot']
                    commit(nop, t, st)
                    out.append(nop)
                    ctx.append(nop)
                    continue
        else:
            ok = [x for x in cands if x[3] == 0]
            if ok:
                nxt = next((m for m in mlist if done_t[m.idx] is None), None)
                anc = None
                if nxt is not None:
                    seen = set()
                    stack = [nxt.idx]
                    while stack:
                        z = stack.pop()
                        for j in prog[z].deps:
                            if done_t[j] is None and j not in seen:
                                seen.add(j)
                                stack.append(j)
                    anc = [x for x in ok if x[0] in seen]
                tmin = min(x[2] for x in ok)
                if anc and min(x[2] for x in anc) <= tmin + 64:
                    tm2 = min(x[2] for x in anc)
                    near = [x for x in anc if x[2] <= tm2 + 4]
                else:
                    near = [x for x in ok if x[2] <= tmin + 4]
                pick = min(near, key=lambda x: (latest[x[0]] + x[1].prio, x[2], x[0]))
            else:
                need = min(x[3] for x in cands)
                nop = Inst('s_nop %d' % (need - 1))
                commit(nop, st['slot'], st)
                out.append(nop)
                ctx.append(nop)
                continue
        i, c, t, nd = pick
        commit(c, t, st)
        done_t[i] = t
        out.append(c)
        ctx.append(c)
        if len(ctx) > 48:
            del ctx[:24]
        remaining.discard(i)
        ready.remove(i)
        for (s, lat) in succ[i]:
            npred[s] -= 1
            if npred[s] == 0:
                ready.append(s)
    if verbose:
        print('scheduled %d instrs, %d mfma, est %d cycles (mfma bound %d)' % (n, nm, max(st['slot'], st['mfma_free']), nm * 16))
    return out


URGENT = 1
FILL_LOOKAHEAD = False
FILL_SLACK = 24


def insert_lgkm_waits(seq, pending=(), slack=None):
    q = list(pending)
    age = {id(x): -48 * (len(q) - i) // 2 - 32 for i, x in enumerate(q)}
    out = []
    st = new_state()
    for c in seq:
        if c.kind in ('label', 'directive'):
            out.append(c)
            continue
        if c.kind == 'wait':
            m = re.search(r'lgkmcnt\((\d+)\)', c.text)
            if m:
                k = int(m.group(1))
                if len(q) > k:
                    q = q[len(q) - k:] if k else []
            out.append(c)
            commit(c, issue_time(None, None, c, st), st)
            continue
        need = -1
        for pos, d in enumerate(q):
            if d.op.startswith('ds_read'):
                if (c.reads & d.writes) or (c.writes & d.writes):
                    need = pos
            else:
                dr = {r for r in d.reads if is_vreg(r)}
            if isinstance(c.tag, dict) and d in c.tag.get('lds_after', ()):
                need = pos
        t = issue_time(None, None, c, st)
        if need >= 0:
            pos = need
            while pos + 1 < len(q) and t - age[id(q[pos + 1])] >= WAIT_LAT:
                pos += 1
            nleft = len(q) - pos - 1
            if nleft > 15:
                pos += nleft - 15
                nleft = 15
            w = Inst('s_waitcnt lgkmcnt(%d)' % nleft)
            k = len(out)
            nds = 0
            while k > 0 and out[k - 1].kind in ('valu', 'trans', 'ds') and len(out) - k < 3:
                if out[k - 1].kind == 'ds':
                    nds += 1
                k -= 1
            hoist = k > 0 and k < len(out) and out[k - 1].kind == 'mfma' and nds <= nleft
            if hoist and nds:
                young = [x for x in out[k:] if x.kind == 'ds']
                hoist = all(any(x is y for y in q[pos + 1:]) for x in young)
            if hoist:
                w = Inst('s_waitcnt lgkmcnt(%d)' % (nleft - nds))
                out.insert(k, w)
            else:
                out.append(w)
            commit(w, issue_time(None, None, w, st), st)
            q = q[pos + 1:]
            t = issue_time(None, None, c, st)
        commit(c, t, st)
        out.append(c)
        if c.kind == 'ds':
            q.append(c)
            age[id(c)] = t
    return out, q


def text_of(seq):
    lines = []
    for c in seq:
        if c.kind == 'label':
            lines.append(c.text)
        else:
            lines.append('    ' + c.text)
    return '\n'.join(lines)


def verify_lgkm(seq, name=''):
    q = []
    bad = []
    for c in seq:
        if c.kind in ('label', 'directive'):
            continue
        if c.kind == 'wait':
            m = re.search(r'lgkmcnt\((\d+)\)', c.text)
            if m:
                k = int(m.group(1))
                if len(q) > k:
                    q = q[len(q) - k:] if k else []
            continue
        for d in q:
            if d.op.startswith('ds_read') and ((c.reads & d.writes) or (c.writes & d.writes)):
                bad.append((name, d.text, c.text))
        if c.kind == 'ds' or c.kind == 'smem':
            q.append(c)
    return bad
```

```python
import argparse
import re
import sys

import asmlib
from asmlib import (Inst, schedule, insert_lgkm_waits, fix_hazards, check_hazards, verify_lgkm, estimate, text_of)

NAME = 'standalone__gqa_softmax__near_ridge_kernel'
SQ, SK, D = 848, 512, 192
QHEAD = SQ * D * 2
KHEAD = SK * D * 2
TILE = 32 * D * 2
SLOT = 2 * TILE
NSLOT = 6
RING = NSLOT * SLOT
OSTAGE = RING
LDS_BYTES = RING + 16384
BIAS = 2048
QBYTES = 512 * QHEAD
KBYTES = 512 * KHEAD

sW = 3
SRD_K, SRD_V, SRD_Q, SRD_O, SRD_A, SRD_B = 4, 8, 12, 16, 20, 24
sOffA, sOffB, sStride, sWA, sWB, sWr = 28, 29, 30, 31, 32, 33
sPair = 34
sW6 = 35
sC, sThr, sTrip, sPat, sT4 = 36, 37, 38, 39, 40
sQn, sOc = 41, 42
sRet = 44
sKs, sVs = 46, 47
sHeadQ = 48
sMember = 49
sD = [56, 57, 58, 59, 60, 61]
sT0, sT1, sT2, sT3 = 62, 63, 64, 65
sOu = [84, 85, 86, 87]
sQa, sQb = 67, 68
sGroup = 43
sPn = 69
QOOB = QBYTES + BIAS

vKA = [1, 2]
vVA = [3, 4, 5, 6]
vOFF = [7, 8, 9]
vB = [10, 11, 12]
vOG, vOR, vOW = 13, 14, 15
vNM = [16, 17, 18, 19]
vL = [20, 21, 22, 23]
vONES = 24
vQA = [28, 29]
vLANE = 0
vDUM = 31
vX = [30]
SB = [32, 64]
PB = [96, 112]
TS = 128
TMP = 144
OV = 160
QB = 96

KF = 192
VF = 240


def S(b, u, kt):
    return SB[b] + (u * 2 + kt) * 4


def P(b, u):
    return PB[b] + 4 * u


def Q(u, ks):
    return QB + (u * 6 + ks) * 4


def O(u, t):
    if u < 2:
        return 'v', OV + (u * 12 + t) * 4
    return 'a', ((u - 2) * 12 + t) * 4


def Oq(u, t):
    f, i = O(u, t)
    return '%s[%d:%d]' % (f, i, i + 3)


def vr(x, n=4):
    return 'v[%d:%d]' % (x, x + n - 1)


def ar(x, n=4):
    return 'a[%d:%d]' % (x, x + n - 1)


class Opt:
    qk_order = 'C'
    pol_kv = ''
    pol_q = 'nt'
    pol_o = 'nt'
    thr = 0x45800000
    stamps = False
    vlead = 4
    bar_lead = 12
    nodma = False
    nobar = False
    verbose = False
    prof = False
    touch = 0
    touch0 = 3
    touch_dk = 1
    touch_dw = 1
    late_e = 0
    e2_t0 = 600
    e2_t1 = 1400
    pol_t = ''
    noepi = False
    patterns = 'mix2'
    q1wait_t = 200
    q3wait_t = 2000
    rt_cycles = False
    wshift = 5
    waitprof = False
    b_pace = 24.0
    b_pace2 = 24.0
    ldsw = 12
    stgap = 60
    fine = ''
    fine_vm = ''
    fine_lo = 0
    fine_hi = 100000
    pk_from = 4
    st_t0 = 0
    st_gap = 0
    qwait_t = 1100
    float_ts = True
    hoist = 3
    nostore = False
    noq = False
    ts_frac = 0.88
    ts_tail = 10
    lds_lat = 140
    wait_lat = 140
    vring = 4
    kring = 12
    nocheck = False
    epi2 = True
    bar_trip = False
    defer_it1 = False
    loop_align = 6
    loop_pad = 0
    wshifts = ''
    wvar = 2
    wbit = 1
    fill = False
    fill_slack = 24
    start2 = 3
    qd_gap = 0
    qd_gap2 = 100
    q3_in_b = False
    e17_in_c = False
    merge_bc = False
    merge_from = 4
    merge_t = 2600
    padnop = 0
    padwin = 0
    kvfix = False
    arr = 2
    e16_in_a = True
    q23wait_t = 300
    active = 8
    active_j = 32
    urgent = False
    k_t0 = 0.0
    k_dt = 0.0
    k_gap = 0.0
    tries = 12
    tries_tr = 1
    defer = 0
    late_t0 = 60
    late_gap = 130
    c_dma_t0 = 900
    epi_prio = -45000
    e3_t0 = 300
    e3_t1 = 900
    vm_inorder = True
    dma_group = 1
    dma_span = 0.8


opt = Opt()


def I(text, **kw):
    return Inst(text, **kw)


def k_read(kt, ks, odd, extra=0):
    idx = (kt * 6 + ks) % opt.kring
    off = kt * 6144 + (ks // 2) * 1024 + odd * SLOT + extra
    return I('ds_read_b128 %s, v%d offset:%d' % (ar(KF + 4 * idx), vKA[ks % 2], off), tag=('kf', kt, ks))


def v_reads(t, odd):
    r = VF + 4 * (t % opt.vring)
    off = (t // 4) * 1024 + odd * SLOT
    return [I('ds_read_b64_tr_b16 %s, v%d offset:%d' % (ar(r, 2), vVA[t % 4], off), tag=('vf', t)),
            I('ds_read_b64_tr_b16 %s, v%d offset:%d' % (ar(r + 2, 2), vVA[t % 4], off + 6144), tag=('vf', t))]


def qk_mfmas(T, sb, order):
    if order == 'A':
        seq = [(kt, ks, u) for kt in range(2) for ks in range(6) for u in range(T)]
    elif order == 'C':
        seq = [(kt, u, ks) for kt in range(2) for u in range(T) for ks in range(6)]
        seq = [(kt, ks, u) for (kt, u, ks) in seq]
    elif order == 'U':
        seq = [(kt, ks, u) for u in range(T) for kt in range(2) for ks in range(6)]
    out = []
    for kt, ks, u in seq:
        d = vr(S(sb, u, kt))
        out.append(I('v_mfma_f32_16x16x32_bf16 %s, %s, %s, %s' % (d, ar(KF + 4 * ((kt * 6 + ks) % opt.kring)), ar(Q(u, ks)), d if ks else '0'),
                     tag=('qk', kt, ks, u)))
    return out


def pv_mfmas(T, pb, first):
    out = []
    for t in range(12):
        for u in range(T):
            d = Oq(u, t)
            out.append(I('v_mfma_f32_16x16x32_bf16 %s, %s, %s, %s' % (d, ar(VF + 4 * (t % opt.vring)), vr(P(pb, u)), '0' if first else d),
                         tag=('pv', t, u)))
    return out


def sm_pairs(T):
    allp = [(u, kt, h) for u in range(T) for kt in range(2) for h in range(2)]
    head = [(u, 0, h) for u in range(T) for h in range(2)][:opt.hoist]
    return head + [p for p in allp if p not in head]


def softmax(T, b, lo=0, hi=None):
    out = []
    pairs = sm_pairs(T)
    for n, (u, kt, h) in enumerate(pairs):
        if n < lo or (hi is not None and n >= hi):
            continue
        if True:
            if True:
                a = S(b, u, kt) + 2 * h
                t0 = TMP + (n % 4) * 2
                out.append(I('v_fma_f32 v%d, v%d, s%d, v%d' % (a, a, sC, vNM[u])))
                out.append(I('v_fma_f32 v%d, v%d, s%d, v%d' % (a + 1, a + 1, sC, vNM[u])))
                out.append(I('v_exp_f32 v%d, v%d' % (t0, a)))
                out.append(I('v_exp_f32 v%d, v%d' % (t0 + 1, a + 1)))
                out.append(I('v_cvt_pk_bf16_f32 v%d, v%d, v%d' % (P(b, u) + 2 * kt + h, t0, t0 + 1)))
    return out


def ts_mfma(u, b):
    return I('v_mfma_f32_16x16x32_bf16 %s, %s, %s, 0' % (vr(TS + 4 * u), vr(vONES), vr(P(b, u))), tag=('ts', u))


def check_ops(T):
    if opt.nocheck:
        return []
    t = [TS + 4 * u for u in range(T)]
    out = [I('v_max3_f32 v%d, v%d, v%d, v%d' % (vX[0], t[0], t[1], t[2]))]
    if T == 4:
        out.append(I('v_max_f32 v%d, v%d, v%d' % (vX[0], vX[0], t[3])))
    out.append(I('v_cmp_lt_f32 vcc, s%d, v%d' % (sThr, vX[0])))
    for x in out:
        x.prio = -100000
    return out


def l_update(T, first):
    if first:
        return [I('v_mov_b32 v%d, v%d' % (vL[u], TS + 4 * u)) for u in range(T)]
    return [I('v_add_f32 v%d, v%d, v%d' % (vL[u], vL[u], TS + 4 * u)) for u in range(T)]


def max_init(T, b):
    out = []
    for u in range(T):
        s = [S(b, u, kt) + i for kt in range(2) for i in range(4)]
        r = TMP + 8 + (u % 2) * 2
        x = r + 1
        out += [I('v_max3_f32 v%d, v%d, v%d, v%d' % (r, s[0], s[1], s[2])),
                I('v_max3_f32 v%d, v%d, v%d, v%d' % (r, r, s[3], s[4])),
                I('v_max3_f32 v%d, v%d, v%d, v%d' % (r, r, s[5], s[6])),
                I('v_max_f32 v%d, v%d, v%d' % (r, r, s[7])),
                I('v_mov_b32 v%d, v%d' % (x, r)),
                I('v_permlane32_swap_b32 v%d, v%d' % (x, r)),
                I('v_max_f32 v%d, v%d, v%d' % (r, r, x)),
                I('v_mov_b32 v%d, v%d' % (x, r)),
                I('v_permlane16_swap_b32 v%d, v%d' % (x, r)),
                I('v_max_f32 v%d, v%d, v%d' % (r, r, x)),
                I('v_mul_f32_e64 v%d, -s%d, v%d' % (vNM[u], sC, r))]
    return out


def dma_entry(rel, chain):
    pol = (' ' + opt.pol_kv) if opt.pol_kv else ''
    out = []
    dm = []
    a = I('s_add_u32 m0, s%d, s%d' % (sWr, sWA))
    out.append(a)
    for c in range(3):
        d = I('buffer_load_dwordx4 v%d, s[%d:%d], s%d offen offset:%d%s lds' % (vOFF[c], SRD_A, SRD_A + 3, sOffA, c * 1024, pol),
              vm_id=('pos', rel))
        out.append(d)
        dm.append(d)
    out.append(I('s_add_u32 m0, s%d, s%d' % (sWr, sWB)))
    for c in range(3):
        d = I('buffer_load_dwordx4 v%d, s[%d:%d], s%d offen offset:%d%s lds' % (vB[c], SRD_B, SRD_B + 3, sOffB, c * 1024, pol),
              vm_id=('pos', rel))
        out.append(d)
        dm.append(d)
    out += [I('s_add_u32 s%d, s%d, s%d' % (sOffA, sOffA, sStride)),
            I('s_add_u32 s%d, s%d, s%d' % (sOffB, sOffB, sStride)),
            I('s_add_u32 s%d, s%d, %d' % (sWr, sWr, SLOT)),
            I('s_cmp_eq_u32 s%d, %d' % (sWr, RING)),
            I('s_cselect_b32 s%d, 0, s%d' % (sWr, sWr))]
    if opt.nodma:
        out = [x for x in out if x.kind != 'dma']
        dm = []
    chain_seq([x for x in out if x.kind == 'salu' or x.kind == 'dma'], chain)
    return out, dm


def chain_seq(seq, chain):
    for x in seq:
        if chain[0] is not None:
            x.after.append(chain[0])
        chain[0] = x


def pair_step(d):
    return [I('s_add_u32 s%d, s%d, %d' % (sT0, sPair, 2 * SLOT)),
            I('s_cmp_eq_u32 s%d, %d' % (sT0, RING)),
            I('s_cselect_b32 s%d, 0, s%d' % (sT0, sT0)),
            I('s_sub_u32 s%d, s%d, s%d' % (d, sT0, sPair)),
            I('s_mov_b32 s%d, s%d' % (sPair, sT0))]


def addr_step(regs, d):
    return [I('v_add_u32 v%d, s%d, v%d' % (r, d, r)) for r in regs]


def vm_wait(need):
    w = I('s_waitcnt vmcnt(0)')
    w.tag = {'need': need}
    return w


def barrier(need, after, notbefore):
    w = vm_wait(need)
    w.after += after
    w.notbefore = notbefore
    w.prio = -100000
    b = I('s_barrier' if not opt.nobar else 's_nop 0')
    b.kind = 'barrier'
    b.after.append(w)
    b.prio = -100000
    return w, b


def interleave(main, extra):
    out = []
    extra = sorted(extra, key=lambda x: x[0])
    k = 0
    for i, m in enumerate(main):
        while k < len(extra) and extra[k][0] <= i:
            out.append(extra[k][1])
            k += 1
        out.append(m)
    out += [e[1] for e in extra[k:]]
    return out


def spread(seq, t0, t1):
    n = len(seq)
    for i, x in enumerate(seq):
        x.notbefore = max(x.notbefore, int(t0 + (t1 - t0) * i / max(n, 1)))
    return seq


def early_v(odd_next, bar, H, T):
    out = []
    for t in range(opt.vlead):
        for j, r in enumerate(v_reads(t, odd_next)):
            if bar is not None:
                r.after.append(bar)
            r.prio = -(H + 400) + 16 * T * t
            r.notbefore = H - 16 * (opt.bar_lead - 2) + 16 * T * t // 2
            out.append(r)
    return out


EPI_RB = TMP
LATE = []
BARC = []


def epilogue(T, bfree_s, bfree_p, rb_base=TMP, defer=0, merged=False):
    pol = (' ' + opt.pol_o) if opt.pol_o else ''
    out = []
    late = []
    base = SB[bfree_s]
    inv = [TS + 2 + 4 * u for u in range(T)]
    for u in range(T):
        out.append(I('v_rcp_f32 v%d, v%d' % (inv[u], vL[u])))
    wa = [PB[bfree_p] + i for i in range(4)] if not merged else [TS + 1 + 4 * i for i in range(4)]
    out.append(I('v_mov_b32 v%d, v%d' % (wa[0], vOW)))
    for i in range(1, 4):
        out.append(I('v_xor_b32 v%d, %d, v%d' % (wa[i], 32 * i, vOW)))
    k = 0
    prev_ds = None
    stores = []
    order = [(c, u) for c in range(3) for u in range(T)]
    n = len(order)
    for c, u in order:
        buf = k % 2
        usepk = k >= opt.pk_from
        for tt in range(4):
            t = 4 * c + tt
            fl, o0 = O(u, t)
            x = base + ((k * 4 + tt) % 4) * 4
            pk = base + 16 + ((k * 4 + tt) % 8) * 2
            if fl == 'a':
                for i in range(4):
                    out.append(I('v_accvgpr_read_b32 v%d, a%d' % (x + i, o0 + i)))
            else:
                x = o0
            if usepk:
                for i in (0, 2):
                    out.append(I('v_pk_mul_f32 v[%d:%d], v[%d:%d], v[%d:%d] op_sel_hi:[1,0]' %
                                 (x + i, x + i + 1, x + i, x + i + 1, inv[u], inv[u] + 1)))
            else:
                for i in range(4):
                    out.append(I('v_mul_f32 v%d, v%d, v%d' % (x + i, x + i, inv[u])))
            out.append(I('v_cvt_pk_bf16_f32 v%d, v%d, v%d' % (pk, x, x + 1)))
            out.append(I('v_cvt_pk_bf16_f32 v%d, v%d, v%d' % (pk + 1, x + 2, x + 3)))
            w = I('ds_write_b64 v%d, v[%d:%d] offset:%d' % (wa[tt], pk, pk + 1, buf * 2048))
            w.prio = opt.epi_prio
            if prev_ds is not None:
                w.after.append(prev_ds)
            prev_ds = w
            out.append(w)
        is_late_st = defer and k >= n - defer
        is_late_rd = defer and k >= n - 2
        rb = rb_base + buf * 8 if not is_late_st else (PB[1] + buf * 8 if not opt.defer_it1 else TMP + 8)
        if merged and k >= opt.merge_from:
            rb = PB[1] + buf * 8
        for rho in range(2):
            r = I('ds_read_b128 %s, v%d offset:%d' % (vr(rb + 4 * rho), vOR, buf * 2048 + rho * 1024))
            r.prio = opt.epi_prio
            if is_late_rd:
                late.append(r)
                continue
            r.after.append(prev_ds)
            prev_ds = r
            out.append(r)
        sts = []
        for rho in range(2):
            st = I('buffer_store_dwordx4 %s, v%d, s[%d:%d], s%d offen offset:%d%s' %
                   (vr(rb + 4 * rho), vOG, SRD_O, SRD_O + 3, sOu[u], rho * 3072 + c * 128, pol), vm_id=('st',))
            if opt.nostore:
                st = I('s_nop 0')
                st.kind = 'salu'
                st.reads = set()
                st.writes = set()
            sts.append(st)
        if is_late_st:
            late += sts
        else:
            out += sts
            stores += sts
        k += 1
    if late:
        held = [x for x in late if x.kind != 'ds'][:2 * (defer - 2)]
        rest = [x for x in late if x not in held]
        seq = list(held)
        rds = [x for x in rest if x.kind == 'ds']
        sts = [x for x in rest if x.kind != 'ds']
        for j in range(2):
            seq += rds[2 * j:2 * j + 2] + sts[2 * j:2 * j + 2]
        late = seq
    return out, stores, late


def epilogue2(T, bfree_s, bfree_p):
    pol = (' ' + opt.pol_o) if opt.pol_o else ''
    out = []
    base = SB[bfree_s]
    inv = [TS + 2 + 4 * u for u in range(T)]
    for u in range(T):
        out.append(I('v_rcp_f32 v%d, v%d' % (inv[u], vL[u])))
    wa = [PB[bfree_p] + i for i in range(4)]
    out.append(I('v_mov_b32 v%d, v%d' % (wa[0], vOW)))
    for i in range(1, 4):
        out.append(I('v_xor_b32 v%d, %d, v%d' % (wa[i], 32 * i, vOW)))
    order = [(c, u) for c in range(3) for u in range(T)]
    prev_ds = None
    stores = []
    k = 0
    nx = 0
    while k < len(order):
        pair = order[k:k + 2]
        for tt in range(4):
            pks = []
            for j, (c, u) in enumerate(pair):
                t = 4 * c + tt
                fl, o0 = O(u, t)
                x = base + (nx % 4) * 4
                pk = base + 16 + ((tt % 4) * 2 + j) * 2
                if fl == 'a':
                    nx += 1
                    for i in range(4):
                        out.append(I('v_accvgpr_read_b32 v%d, a%d' % (x + i, o0 + i)))
                else:
                    x = o0
                if k + j >= opt.pk_from:
                    for i in (0, 2):
                        out.append(I('v_pk_mul_f32 v[%d:%d], v[%d:%d], v[%d:%d] op_sel_hi:[1,0]' %
                                     (x + i, x + i + 1, x + i, x + i + 1, inv[u], inv[u] + 1)))
                else:
                    for i in range(4):
                        out.append(I('v_mul_f32 v%d, v%d, v%d' % (x + i, x + i, inv[u])))
                out.append(I('v_cvt_pk_bf16_f32 v%d, v%d, v%d' % (pk, x, x + 1)))
                out.append(I('v_cvt_pk_bf16_f32 v%d, v%d, v%d' % (pk + 1, x + 2, x + 3)))
                pks.append(pk)
            if len(pair) == 2:
                w = I('ds_write2st64_b64 v%d, v[%d:%d], v[%d:%d] offset0:0 offset1:4' % (wa[tt], pks[0], pks[0] + 1, pks[1], pks[1] + 1))
            else:
                w = I('ds_write_b64 v%d, v[%d:%d] offset:0' % (wa[tt], pks[0], pks[0] + 1))
            w.prio = opt.epi_prio
            if prev_ds is not None:
                w.after.append(prev_ds)
            prev_ds = w
            out.append(w)
        for j, (c, u) in enumerate(pair):
            rb = TMP + j * 8
            for rho in range(2):
                r = I('ds_read_b128 %s, v%d offset:%d' % (vr(rb + 4 * rho), vOR, j * 2048 + rho * 1024))
                r.prio = opt.epi_prio
                r.after.append(prev_ds)
                prev_ds = r
                out.append(r)
        for j, (c, u) in enumerate(pair):
            rb = TMP + j * 8
            for rho in range(2):
                st = I('buffer_store_dwordx4 %s, v%d, s[%d:%d], s%d offen offset:%d%s' %
                       (vr(rb + 4 * rho), vOG, SRD_O, SRD_O + 3, sOu[u], rho * 3072 + c * 128, pol), vm_id=('st',))
                out.append(st)
                stores.append(st)
        k += 2
    return out, stores, []


def qoff_calc(dst):
    o = []
    A = lambda t: o.append(I(t))
    A('s_lshr_b32 s%d, s%d, s%d' % (sT0, sPat, sPn))
    A('s_and_b32 s%d, s%d, 1' % (sT0, sT0))
    A('s_lshl_b32 s%d, s%d, 1' % (sT0, sT0))
    A('s_add_u32 s%d, s%d, s%d' % (sT0, sT0, sMember))
    A('s_and_b32 s%d, s%d, 3' % (sT0, sT0))
    A('s_mul_i32 s%d, s%d, 3' % (sT1, sW))
    A('s_lshl_b32 s%d, s%d, 2' % (sT2, sW))
    A('s_mov_b32 s%d, 1' % sT4)
    A('s_add_u32 s%d, s%d, 17' % (sT3, sT1))
    A('s_cmp_eq_u32 s%d, 0' % sW)
    A('s_cselect_b32 s%d, 16, s%d' % (sT3, sT3))
    A('s_cselect_b32 s%d, 1, 0' % dst)
    A('s_cmp_eq_u32 s%d, 1' % sT0)
    A('s_cselect_b32 s%d, s%d, s%d' % (sT2, sT3, sT2))
    A('s_cselect_b32 s%d, s%d, s%d' % (sT4, dst, sT4))
    A('s_add_u32 s%d, s%d, 29' % (sT3, sT1))
    A('s_cmp_eq_u32 s%d, 2' % sT0)
    A('s_cselect_b32 s%d, s%d, s%d' % (sT2, sT3, sT2))
    A('s_cselect_b32 s%d, 0, s%d' % (sT4, sT4))
    A('s_add_u32 s%d, s%d, 41' % (sT3, sT1))
    A('s_cmp_eq_u32 s%d, 3' % sT0)
    A('s_cselect_b32 s%d, s%d, s%d' % (sT2, sT3, sT2))
    A('s_cselect_b32 s%d, 0, s%d' % (sT4, sT4))
    A('s_mul_i32 s%d, s%d, 6144' % (sT2, sT2))
    A('s_add_u32 s%d, s%d, s%d' % (dst, sHeadQ, sT2))
    return o


def frags_of(m):
    tg = m.tag
    if tg[0] == 'qk':
        return [('kf', tg[1], tg[2]), ('qf', tg[3], tg[2])]
    if tg[0] == 'pv':
        return [('vf', tg[1])]
    return []


def q_read(u, ks, areg, imm):
    return I('ds_read_b128 %s, v%d offset:%d' % (ar(Q(u, ks)), areg[ks % 2], imm + (ks // 2) * 1024), tag=('qf', u, ks))


def with_reads(mf, rd):
    out = []
    placed = set()
    for m in mf:
        want = frags_of(m)
        for r in rd:
            if id(r) not in placed and r.tag in want:
                out.append(r)
                placed.add(id(r))
        out.append(m)
    for r in rd:
        assert id(r) in placed, r.text
    return out


def place_ts(mf, T, b, frac=None, tailgap=None):
    if opt.float_ts:
        out = list(mf)
        for u in range(T):
            m = ts_mfma(u, b)
            m.floating = True
            out.append(m)
        return out

    frac = opt.ts_frac if frac is None else frac
    tailgap = opt.ts_tail if tailgap is None else tailgap
    nmain = len(mf)
    ex = []
    for u in range(T):
        pos = int(round(nmain * (u + 1) / T * frac)) if u < T - 1 else nmain - tailgap
        ex.append((min(pos, nmain - tailgap), ts_mfma(u, b)))
    return interleave(mf, ex)


def dma_group(rels, chain, t0, t1):
    prog = []
    dmas = []
    for rel in rels:
        d, dm = dma_entry(rel, chain)
        prog += d
        dmas += dm
    g = opt.dma_group
    nb = max((len(dmas) + g - 1) // g, 1)
    for i, d in enumerate(dmas):
        d.notbefore = int(t0 + (t1 - t0) * (i // g) / nb)
        d.prio = -100000
    return prog, dmas


def phase_iter(T, b, odd, first_pv, first_l, dma_rels, need, next_odd, name, kstep=None, vstep=None, pstep=None,
               tail=None, shift=0, late=(), bar_mode='normal'):
    nb = 1 - b
    chain = [None]
    prog = []
    H = 16 * 25 * T
    if pstep is not None:
        p = pair_step(pstep)
        chain_seq(p, chain)
        prog += p
    prog += l_update(T, first_l)
    d, dmas = dma_group(dma_rels, chain, 48, H * opt.dma_span)
    prog += d
    nst = 0
    for x in late:
        if x.kind == 'vst':
            x.notbefore = int(H * 0.15) + int(H * 0.2) * nst
            nst += 1
        else:
            x.notbefore = max(0, int(H * 0.15) + int(H * 0.2) * nst - 200)
        x.prio = -45000
    prog += list(late)
    prog += softmax(T, b, lo=opt.hoist)
    vre = []
    for t in range(opt.vlead, 12):
        vre += v_reads(t, odd)
    kre = [k_read(kt, ks, odd) for kt in range(2) for ks in range(6)]
    for i, r in enumerate(kre):
        r.notbefore = int(H * (opt.k_t0 + opt.k_dt * i + (opt.k_gap if i >= 6 else 0)))
    mf = pv_mfmas(T, nb, first_pv) + qk_mfmas(T, nb, opt.qk_order)
    mf = place_ts(mf, T, b)
    prog += with_reads(mf, vre + kre)
    prog += check_ops(T)
    br = site(T, b, name)
    for x in br:
        x.after += [m for m in mf if m.tag[0] in ('pv', 'ts')]
    prog += br
    nxt = softmax(T, nb, lo=0, hi=opt.hoist)
    for x in nxt:
        x.after += br
    prog += nxt
    if tail:
        for x in tail:
            x.prio = -90000
        tail[0].after += [chain[0]] + br
        chain_seq(tail, [None])
        prog += tail
    if vstep is not None:
        prog += addr_step(vVA, vstep)
    if kstep is not None:
        prog += addr_step(vKA, kstep)
    if bar_mode == 'none':
        ev = early_v(next_odd, None, H, T)
        prog += ev
        return prog
    w, bar = barrier(need, list(dmas), H - 16 * (opt.bar_lead + shift))
    if bar_mode == 'trip':
        bar.reads = set().union(*[r.writes for r in kre + vre])
        bar.after += vre + kre
    prog += [w, bar]
    prog += early_v(next_odd, bar, H, T)
    return prog


def q_tile_dma(u, slot_sreg, slot_imm, chain, tag):
    pol = (' ' + opt.pol_q) if opt.pol_q else ''
    out = []
    o = [I('s_and_b32 s%d, s%d, 1' % (sT1, sW)),
         I('s_mul_i32 s%d, s%d, 3072' % (sT1, sT1)),
         I('s_add_u32 s%d, s%d, %d' % (sQa, sQn, u * 6144)),
         I('s_add_u32 s%d, s%d, s%d' % (sQb, sQa, sT1)),
         I('s_add_u32 s%d, s%d, s%d' % (sT2, slot_sreg, sW6)),
         I('s_add_u32 s%d, s%d, %d' % (sT2, sT2, slot_imm)),
         I('s_add_u32 m0, s%d, s%d' % (sT2, sT1))]
    out += o
    dm = []
    for c in range(3):
        d = I('buffer_load_dwordx4 v%d, s[%d:%d], s%d offen offset:%d%s lds' % (vOFF[c], SRD_Q, SRD_Q + 3, sQb, c * 1024, pol), vm_id=tag)
        out.append(d)
        dm.append(d)
    o2 = [I('s_sub_u32 s%d, 3072, s%d' % (sT1, sT1)),
          I('s_add_u32 s%d, s%d, s%d' % (sQb, sQa, sT1)),
          I('s_add_u32 m0, s%d, s%d' % (sT2, sT1))]
    out += o2
    for c in range(3):
        d = I('buffer_load_dwordx4 v%d, s[%d:%d], s%d offen offset:%d%s lds' % (TMP + 12 + c, SRD_Q, SRD_Q + 3, sQb, c * 1024, pol), vm_id=tag)
        out.append(d)
        dm.append(d)
    if opt.nodma:
        out = [x for x in out if x.kind != 'dma']
        dm = []
    chain_seq(out, chain)
    return out, dm


def kv_mode():
    o = []
    for i in range(4):
        o.append(I('s_mov_b32 s%d, s%d' % (SRD_A + i, SRD_K + i)))
        o.append(I('s_mov_b32 s%d, s%d' % (SRD_B + i, SRD_V + i)))
    o += [I('s_mov_b32 s%d, s%d' % (sOffA, sKs)), I('s_mov_b32 s%d, s%d' % (sOffB, sVs)),
          I('s_mul_i32 s%d, s%d, 3072' % (sWA, sW)), I('s_add_u32 s%d, s%d, %d' % (sWB, sWA, TILE)),
          I('s_mov_b32 s%d, %d' % (sStride, 0 if opt.kvfix else TILE))]
    v = [I('v_mov_b32 v%d, v%d' % (vB[c], vOFF[c])) for c in range(3)]
    return o, v


def phase_A(T, Tn, last, name):
    chain = [None]
    prog = []
    H = 16 * 13 * T + 4 * 30 * T
    prog += l_update(T, False)
    dmas = []
    if not last:
        km, kv = kv_mode()
        p = pair_step(sD[0])
        chain_seq(km + p, chain)
        prog += km + p + kv
        w = vm_wait([('pos', 14)])
        w.prio = -100000
        prog.append(w)
        prog += [I('v_add_u32 v%d, s%d, v%d' % (vQA[m], sW6, vKA[m])) for m in range(2)]
        prog += [I('v_add_u32 v%d, s%d, v%d' % (vQA[m], sD[0], vQA[m])) for m in range(2)]
        prog += [I('v_xor_b32 v%d, 80, v%d' % (TMP + 12 + c, vOFF[c])) for c in range(3)]
        q0 = [q_read(0, ks, vQA, 0) for ks in range(6)]
        for r in q0:
            r.after.append(w)
            r.prio = -50000
        prog += q0
        d, dm = q_tile_dma(2, sPair, 0, chain, ('q', 2))
        for x in dm:
            x.reads = x.reads | set().union(*[r.writes for r in q0])
            x.prio = -40000
        prog += d
        dmas += dm
        if not opt.late_e:
            d, dm = dma_group([16], chain, 200, H * 0.7)
            for x in dm:
                x.after.append(w)
            prog += d
            dmas += dm
    prog += softmax(T, 1, lo=opt.hoist)
    vre = []
    for t in range(opt.vlead, 12):
        vre += v_reads(t, 0)
    mf = place_ts(pv_mfmas(T, 0, False), T, 1, frac=1.0, tailgap=3)
    prog += with_reads(mf, vre)
    prog += check_ops(T)
    br = site(T, 1, name)
    for x in br:
        x.after += mf
    prog += br
    w, bar = barrier([('pos', 13)], list(dmas), 16 * 13 * T)
    prog += [w, bar]
    prog += early_v(1, bar, 16 * 13 * T + 200, T)
    return prog


def phase_B(T, Tn, last):
    chain = [None]
    prog = [I('s_add_u32 s%d, s%d, %d' % (sOu[u], sOc, u * 6144)) for u in range(T)]
    for x in prog:
        x.prio = -200000
    prog += l_update(T, False)
    dmas = []
    qd = []
    if not last:
        w1 = vm_wait([('pos', 15)])
        w1.prio = -100000
        w1.notbefore = opt.q1wait_t
        prog.append(w1)
        q1 = [q_read(1, ks, vQA, SLOT) for ks in range(6)]
        for r in q1:
            r.after.append(w1)
            r.prio = -55000
        prog += q1
        if Tn == 4:
            prog += [I('v_xor_b32 v%d, 80, v%d' % (TMP + 12 + c, vOFF[c])) for c in range(3)]
            d, qd = q_tile_dma(3, sPair, SLOT, chain, ('q', 3))
            for x in qd:
                x.reads = x.reads | set().union(*[r.writes for r in q1])
                x.prio = -54000
            prog += d
        p = pair_step(sD[1])
        p.append(I('s_add_u32 s%d, s%d, s%d' % (sD[3], sD[0], sD[1])))
        chain_seq(p, chain)
        prog += p
        if opt.late_e == 0:
            d, dm = dma_group([17], chain, opt.e3_t0, opt.e3_t1)
        elif opt.late_e == 1:
            d, dm = dma_group([16], chain, opt.e2_t0, opt.e2_t1)
        else:
            d, dm = dma_group([16, 17], chain, opt.e2_t0, opt.e2_t1 + 800)
        prog += d
        dmas += dm
    vre = []
    for t in range(opt.vlead, 12):
        vre += v_reads(t, 1)
    for r in vre:
        r.prio = -60000
    mf = pv_mfmas(T, 1, False)
    for j, m in enumerate(mf):
        m.notbefore = int(opt.b_pace * j)
    prog += with_reads(mf, vre)
    ep, stores, late = epilogue(T, 1, 0, rb_base=EPI_RB, defer=0 if last else opt.defer)
    LATE[:] = late
    if opt.noepi:
        ep, stores = [], []
    prog += ep
    if not last:
        kre = [k_read(kt, ks, 0) for kt in range(2) for ks in range(6)]
        for i, r in enumerate(kre):
            r.prio = -50000
        w = vm_wait([('q', 2)])
        w.after += (dmas if not opt.late_e else []) + qd
        w.prio = -50000
        prog.append(w)
        qre = [q_read(2, ks, vQA, 0) for ks in range(6)]
        for r in qre:
            r.after.append(w)
            r.prio = -50000
        if Tn == 4:
            w3 = vm_wait([('q', 3)])
            w3.after.append(w)
            w3.prio = -50000
            prog.append(w3)
            q3 = [q_read(3, ks, vQA, SLOT) for ks in range(6)]
            for r in q3:
                r.after.append(w3)
                r.prio = -50000
            qre += q3
        qk = qk_mfmas(Tn, 0, 'U' if opt.kring == 12 else 'A')
        t0 = opt.b_pace * len(mf)
        for j, m in enumerate(qk):
            m.notbefore = int(t0 + opt.b_pace2 * j)
        for i, r in enumerate(kre):
            r.notbefore = max(0, int(t0) - 400 + 24 * i)
        w.notbefore = max(opt.qwait_t, int(t0 + opt.b_pace2 * 24) - 300)
        if Tn == 4:
            w3.notbefore = max(opt.q3wait_t, int(t0 + opt.b_pace2 * 36) - 300)
        prog += with_reads(qk, kre + qre)
        prog += addr_step(vVA, sD[3])
        bar = I('s_barrier' if not opt.nobar else 's_nop 0')
        bar.kind = 'barrier'
        bar.after.append(qk[-1])
        prog.append(bar)
        fin = [I('s_mov_b32 s%d, s%d' % (sOc, sQn))]
        fin[0].after += stores
        prog += fin
    return prog


vQB = [TMP + 10, TMP + 11]


def phase_A2(T, Tn, last, name):
    chain = [None]
    prog = []
    H = 16 * 13 * T + 4 * 30 * T
    prog += l_update(T, False)
    dmas = []
    p = [I('s_add_u32 s%d, s%d, %d' % (sT3, sPair, SLOT))] + pair_step(sD[0])
    chain_seq(p, chain)
    prog += p
    if not last:
        w = vm_wait([('pos', 13), ('pos', 14)])
        w.prio = -100000
        prog.append(w)
        prog += [I('v_add_u32 v%d, s%d, v%d' % (vQA[m], sW6, vKA[m])) for m in range(2)]
        prog += [I('v_add_u32 v%d, s%d, v%d' % (vQB[m], sD[0], vQA[m])) for m in range(2)]
        prog += [I('v_xor_b32 v%d, 80, v%d' % (TMP + 12 + c, vOFF[c])) for c in range(3)]
        q0 = [q_read(0, ks, vQA, SLOT) for ks in range(6)]
        q1 = [q_read(1, ks, vQB, 0) for ks in range(6)]
        for r in q0 + q1:
            r.after.append(w)
            r.prio = -50000
        prog += q0 + q1
        d, dm = q_tile_dma(2, sT3, 0, chain, ('q', 2))
        for i, x in enumerate(dm):
            x.reads = x.reads | set().union(*[r.writes for r in q0])
            x.prio = -40000
            x.notbefore = 100 + opt.qd_gap * i
        prog += d
        dmas += dm
        if Tn == 4 and not opt.q3_in_b:
            d, dm = q_tile_dma(3, sPair, 0, chain, ('q', 3))
            for i, x in enumerate(dm):
                x.reads = x.reads | set().union(*[r.writes for r in q1])
                x.prio = -40000
                x.notbefore = 100 + opt.qd_gap * (6 + i)
            prog += d
            dmas += dm
        if opt.e16_in_a:
            d, dm = dma_group([16], chain, int(H * 0.4), int(H * 0.9))
            prog += d
            dmas += dm
    prog += softmax(T, 1, lo=opt.hoist)
    vre = []
    for t in range(opt.vlead, 12):
        vre += v_reads(t, 0)
    mf = place_ts(pv_mfmas(T, 0, False), T, 1, frac=1.0, tailgap=3)
    prog += with_reads(mf, vre)
    prog += check_ops(T)
    br = site(T, 1, name)
    for x in br:
        x.after += mf
    prog += br
    prog += addr_step(vVA, sD[0])
    w, bar = barrier([('pos', 15)], list(dmas), 16 * 13 * T)
    prog += [w, bar]
    prog += early_v(1, bar, 16 * 13 * T + 200, T)
    return prog


def phase_B2(T, Tn, last):
    chain = [None]
    prog = [I('s_add_u32 s%d, s%d, %d' % (sOu[u], sOc, u * 6144)) for u in range(T)]
    for x in prog:
        x.prio = -200000
    prog += l_update(T, False)
    vre = []
    for t in range(opt.vlead, 12):
        vre += v_reads(t, 1)
    for r in vre:
        r.prio = -60000
    mf = pv_mfmas(T, 1, False)
    for j, m in enumerate(mf):
        m.notbefore = int(opt.b_pace * j)
    if opt.epi2:
        ep, stores, late = epilogue2(T, 1, 0)
    else:
        ep, stores, late = epilogue(T, 1, 0, rb_base=EPI_RB, defer=0 if last else opt.defer, merged=opt.merge_bc and not last)
    LATE[:] = late
    t0 = opt.b_pace * len(mf)
    qre = []
    if not last:
        if Tn == 4 and opt.q3_in_b:
            prog += [I('v_xor_b32 v%d, 80, v%d' % (TMP + 12 + c, vOFF[c])) for c in range(3)]
            d, dm = q_tile_dma(3, sPair, 0, chain, ('q', 3))
            for i, x in enumerate(dm):
                x.prio = -54000
                x.notbefore = opt.qd_gap2 * i
            prog += d
        brel = ([] if opt.e16_in_a else [16]) + ([] if opt.e17_in_c else [17])
        d, dm = dma_group(brel, chain, opt.e3_t0, opt.e3_t1)
        p = pair_step(sD[1])
        chain_seq(p, chain)
        prog += d + p
        w = vm_wait([('q', 2)] + ([('q', 3)] if Tn == 4 else []))
        w.prio = -50000
        w.notbefore = opt.q23wait_t
        prog.append(w)
        qre = [q_read(2, ks, vQA, SLOT) for ks in range(6)]
        if Tn == 4:
            qre += [q_read(3, ks, vQB, 0) for ks in range(6)]
        for r in qre:
            r.after.append(w)
            r.prio = -50000
        prog += qre
    prog += with_reads(mf, vre)
    prog += ep
    if not last:
        kre = [k_read(kt, ks, 0) for kt in range(2) for ks in range(6)]
        for i, r in enumerate(kre):
            r.prio = -50000
            r.notbefore = max(0, int(t0) - 400 + 24 * i)
        qk = qk_mfmas(Tn, 0, 'U' if opt.kring == 12 else 'A')
        for j, m in enumerate(qk):
            m.notbefore = int(t0 + opt.b_pace2 * j)
        prog += with_reads(qk, kre)
        prog += addr_step(vVA, sD[1])
        prog += addr_step(vKA, sD[0])
        bar = I('s_barrier' if not opt.nobar else 's_nop 0')
        bar.kind = 'barrier'
        bar.after.append(qk[-1])
        prog.append(bar)
        BARC[:] = [bar]
        fin = [I('s_mov_b32 s%d, s%d' % (sOc, sQn))]
        if not opt.merge_bc:
            fin[0].after += stores
        prog += fin
    return prog


def mode_code2(T, sfx):
    o = mode_code(T, sfx)
    body = o[1:-1]
    km, kv = kv_mode()
    return ([o[0], I('s_cmp_eq_u32 s%d, 5' % sTrip), I('s_cbranch_scc1 L_mode%d%s_kv' % (T, sfx))] + body + [o[-1]] +
            [I('L_mode%d%s_kv:' % (T, sfx))] + km + kv + [I('s_branch L_modeback%d%s' % (T, sfx))])


def next_q_calc():
    o = [I('s_add_u32 s%d, s%d, 1' % (sPn, sPn)),
         I('s_add_u32 s%d, s%d, %d' % (sHeadQ, sHeadQ, QHEAD))]
    o += qoff_calc(sQn)
    o += [I('s_cmp_ge_u32 s%d, 8' % sPn),
          I('s_cselect_b32 s%d, %d, s%d' % (sQn, QOOB, sQn))]
    return o


def phase_C(T, dma_rels, need, odd_k, kstep, upd, late=(), after_bar=None, t_off=0, k_extra=0):
    chain = [None]
    prog = []
    H = 16 * 13 * T + 4 * 44 * T
    if upd:
        o = next_q_calc()
        chain_seq(o, chain)
        prog += o
    late = list(late)
    nst = 0
    for x in late:
        if x.kind == 'vst':
            x.notbefore = opt.late_t0 + opt.late_gap * nst
            nst += 1
        x.prio = -45000
    prog += late
    d, dmas = dma_group(dma_rels, chain, t_off + (opt.c_dma_t0 if late else 32), t_off + H * (0.9 if late else 0.5))
    if after_bar is not None:
        for x in d:
            if x.kind == 'dma':
                x.after.append(after_bar)
    prog += d
    kre = [k_read(kt, ks, odd_k, k_extra) for kt in range(2) for ks in range(6)]
    for r in kre:
        r.prio = -50000
    prog += max_init(T, 0)
    prog += softmax(T, 0)
    mf = place_ts(qk_mfmas(T, 1, opt.qk_order), T, 0, frac=1.0, tailgap=1)
    prog += with_reads(mf, kre)
    prog += softmax(T, 1, lo=0, hi=opt.hoist)
    prog += addr_step(vKA, kstep)
    w, bar = barrier(need, list(dmas), t_off + H - 16 * opt.bar_lead)
    prog += [w, bar]
    prog += early_v(0, bar, t_off + H, T)
    return prog


def mode_code(T, sfx=''):
    o = []
    A = lambda t: o.append(I(t))
    A('L_mode%d%s:' % (T, sfx))
    A('s_mov_b32 s%d, s%d' % (sKs, sOffA))
    A('s_mov_b32 s%d, s%d' % (sVs, sOffB))
    for i in range(4):
        A('s_mov_b32 s%d, s%d' % (SRD_A + i, SRD_Q + i))
        A('s_mov_b32 s%d, s%d' % (SRD_B + i, SRD_Q + i))
    A('s_and_b32 s%d, s%d, 1' % (sT1, sW))
    A('s_mul_i32 s%d, s%d, 3072' % (sT1, sT1))
    A('s_add_u32 s%d, s%d, s%d' % (sOffA, sQn, sT1))
    A('s_add_u32 s%d, s%d, s%d' % (sWA, sW6, sT1))
    A('s_sub_u32 s%d, 3072, s%d' % (sT1, sT1))
    A('s_add_u32 s%d, s%d, s%d' % (sOffB, sQn, sT1))
    A('s_add_u32 s%d, s%d, s%d' % (sWB, sW6, sT1))
    A('s_mov_b32 s%d, 6144' % sStride)
    for c in range(3):
        A('v_xor_b32 v%d, 80, v%d' % (vB[c], vOFF[c]))
    A('s_branch L_modeback%d%s' % (T, sfx))
    return o


def touch_slots(w):
    out = []
    for k in range(3):
        slot = min(opt.touch0 + opt.touch_dk * k + opt.touch_dw * w, 11)
        out.append((k, slot // 2, slot % 2))
    return out


def touch_code(T, sfx, k):
    pol = (' ' + opt.pol_t) if opt.pol_t else ''
    return [I('L_touch%d%s_%d:' % (T, sfx, k)), I('v_lshlrev_b32 v%d, 7, v%d' % (vX[0], vLANE)),
            I('s_add_u32 s%d, s%d, %d' % (sT1, sQn, BIAS + 8192 * k)),
            I('buffer_load_dword v%d, v%d, s[%d:%d], s%d offen%s' % (vDUM, vX[0], SRD_Q, SRD_Q + 3, sT1, pol)),
            I('s_branch L_touchback%d%s_%d' % (T, sfx, k))]


def rare_code(T, b):
    o = []
    A = lambda t: o.append(I(t))
    A('L_rare%d_%d:' % (T, b))
    A('s_nop 15')
    r, x, dl, f = TMP, TMP + 1, TMP + 2, TMP + 3
    for u in range(T):
        s = [S(b, u, kt) + i for kt in range(2) for i in range(4)]
        A('v_max3_f32 v%d, v%d, v%d, v%d' % (r, s[0], s[1], s[2]))
        A('v_max3_f32 v%d, v%d, v%d, v%d' % (r, r, s[3], s[4]))
        A('v_max3_f32 v%d, v%d, v%d, v%d' % (r, r, s[5], s[6]))
        A('v_max_f32 v%d, v%d, v%d' % (r, r, s[7]))
        A('v_mov_b32 v%d, v%d' % (x, r))
        A('v_permlane32_swap_b32 v%d, v%d' % (x, r))
        A('v_max_f32 v%d, v%d, v%d' % (r, r, x))
        A('v_mov_b32 v%d, v%d' % (x, r))
        A('v_permlane16_swap_b32 v%d, v%d' % (x, r))
        A('v_max_f32 v%d, v%d, v%d' % (r, r, x))
        A('v_max_f32 v%d, 0, v%d' % (dl, r))
        A('v_sub_f32 v%d, v%d, v%d' % (vNM[u], vNM[u], dl))
        A('v_sub_f32 v%d, 0, v%d' % (f, dl))
        A('v_exp_f32 v%d, v%d' % (f, f))
        A('v_mul_f32 v%d, v%d, v%d' % (vL[u], vL[u], f))
        for t in range(12):
            fl, o0 = O(u, t)
            if fl == 'v':
                for i in range(4):
                    A('v_mul_f32 v%d, v%d, v%d' % (o0 + i, o0 + i, f))
                continue
            for i in range(4):
                A('v_accvgpr_read_b32 v%d, a%d' % (TMP + 4 + i, o0 + i))
            for i in range(4):
                A('v_mul_f32 v%d, v%d, v%d' % (TMP + 4 + i, TMP + 4 + i, f))
            for i in range(4):
                A('v_accvgpr_write_b32 a%d, v%d' % (o0 + i, TMP + 4 + i))
        for kt in range(2):
            for h in range(2):
                a = S(b, u, kt) + 2 * h
                A('v_sub_f32 v%d, v%d, v%d' % (a, a, dl))
                A('v_sub_f32 v%d, v%d, v%d' % (a + 1, a + 1, dl))
                A('v_exp_f32 v%d, v%d' % (TMP + 8, a))
                A('v_exp_f32 v%d, v%d' % (TMP + 9, a + 1))
                A('v_cvt_pk_bf16_f32 v%d, v%d, v%d' % (P(b, u) + 2 * kt + h, TMP + 8, TMP + 9))
        o.append(ts_mfma(u, b))
    A('s_nop 15')
    A('s_setpc_b64 s[%d:%d]' % (sRet, sRet + 1))
    return fix_hazards(o)


def start_pre(T):
    o = []
    A = lambda t, **kw: o.append(I(t, **kw))
    pol = (' ' + opt.pol_q) if opt.pol_q else ''
    polk = (' ' + opt.pol_kv) if opt.pol_kv else ''
    for c in range(3):
        A('v_xor_b32 v%d, 80, v%d' % (TMP + 12 + c, vOFF[c]))
    slots = [2, 3, 0, 1]
    chain = [None]
    for e in range(2):
        A('s_add_u32 m0, s%d, %d' % (sWA, (4 + e) * SLOT))
        for c in range(3):
            A('buffer_load_dwordx4 v%d, s[%d:%d], s%d offen offset:%d%s lds' % (vOFF[c], SRD_K, SRD_K + 3, sOffA, c * 1024, polk), vm_id=('pos', 4 + e))
        A('s_add_u32 s%d, s%d, %d' % (sOffA, sOffA, TILE))
    A('s_mov_b32 s%d, s%d' % (sQn, sOc))
    for u in range(T):
        A('s_mov_b32 s%d, %d' % (sT3, slots[u] * SLOT))
        d, dm = q_tile_dma(u, sT3, 0, [None], ('q0', u))
        for x in d:
            x.after = []
        o.extend(d)
    o.extend(late_addr())
    o.append(vm_wait([('q0', u) for u in range(T)] + [('pos', 4), ('pos', 5)]))
    for m in range(2):
        A('v_add_u32 v%d, s%d, v%d' % (vQA[m], sW6, vKA[m]))
    for m in range(2):
        A('v_add_u32 v%d, %d, v%d' % (TMP + m, 2 * SLOT, vQA[m]))
    for u in range(T):
        sl = slots[u]
        reg, imm = (vQA, sl * SLOT) if sl < 2 else ([TMP, TMP + 1], (sl - 2) * SLOT)
        for ks in range(6):
            A('ds_read_b128 %s, v%d offset:%d' % (ar(Q(u, ks)), reg[ks % 2], imm + (ks // 2) * 1024))
    for m in range(2):
        A('v_add_u32 v%d, %d, v%d' % (vKA[m], 4 * SLOT, vKA[m]))
    A('s_waitcnt lgkmcnt(0)')
    A('s_barrier')
    A('s_mov_b32 s%d, 0' % sWr)
    A('s_mov_b32 s%d, %d' % (sPair, 4 * SLOT))
    return o


def start2_pre(T):
    o = []
    A = lambda t, **kw: o.append(I(t, **kw))
    polk = (' ' + opt.pol_kv) if opt.pol_kv else ''
    for c in range(3):
        A('v_xor_b32 v%d, 80, v%d' % (TMP + 12 + c, vOFF[c]))
    slots = [1, 2, 3, 5]

    def ktile(half, tag):
        A('s_add_u32 m0, s%d, %d' % (sWA, 4 * SLOT + half * TILE))
        for c in range(3):
            A('buffer_load_dwordx4 v%d, s[%d:%d], s%d offen offset:%d%s lds' % (vOFF[c], SRD_K, SRD_K + 3, sOffA, c * 1024, polk), vm_id=tag)
        A('s_add_u32 s%d, s%d, %d' % (sOffA, sOffA, TILE))
    ktile(0, ('pos', 4))
    A('s_mov_b32 s%d, s%d' % (sQn, sOc))
    for u in range(T):
        A('s_mov_b32 s%d, %d' % (sT3, slots[u] * SLOT))
        d, dm = q_tile_dma(u, sT3, 0, [None], ('q0', u))
        for x in d:
            x.after = []
        o.extend(d)
    ktile(1, ('pos', 5))
    A('s_mov_b32 s%d, 0' % sWr)
    d, dm = dma_entry(6, [None])
    for x in d:
        x.after = []
    o.extend(d)
    o.extend(late_addr())
    base = [vQA, [TMP, TMP + 1], [TMP + 2, TMP + 3]]
    for j in range(3):
        for m in range(2):
            A('v_add_u32 v%d, s%d, v%d' % (base[j][m], sW6, vKA[m]))
            if j:
                A('v_add_u32 v%d, %d, v%d' % (base[j][m], 2 * j * SLOT, base[j][m]))
    for m in range(2):
        A('v_add_u32 v%d, %d, v%d' % (vKA[m], 4 * SLOT, vKA[m]))
    A('s_mov_b32 s%d, %d' % (sPair, 4 * SLOT))
    o.append(vm_wait([('pos', 4)]))
    A('s_barrier')
    return o


def phase_B02(T):
    chain = [None]
    prog = []
    slots = [1, 2, 3, 5]
    base = [vQA, [TMP, TMP + 1], [TMP + 2, TMP + 3]]
    p = pair_step(sD[1])
    chain_seq(p, chain)
    prog += p
    kre = [k_read(kt, ks, 0) for kt in range(2) for ks in range(6)]
    for r in kre:
        r.prio = -200000
    prog += kre
    qk = qk_mfmas(T, 0, 'U')
    prev = None
    for u in range(T):
        w = vm_wait([('q0', u)])
        w.prio = -100000
        w.after += prev if prev is not None else kre
        prog.append(w)
        rd = [q_read(u, ks, base[slots[u] // 2], (slots[u] % 2) * SLOT) for ks in range(6)]
        for r in rd:
            r.after.append(w)
            r.prio = -50000
        prog += rd
        mine = [m for m in qk if m.tag[3] == u]
        prog += mine
        prev = mine[-1:]
    bl = barrier([('pos', 5)], [qk[-1]], 0)
    prog += list(bl)
    return prog


def start3_pre(T):
    o = []
    A = lambda t, **kw: o.append(I(t, **kw))
    polk = (' ' + opt.pol_kv) if opt.pol_kv else ''
    for c in range(3):
        A('v_xor_b32 v%d, 80, v%d' % (TMP + 12 + c, vOFF[c]))
    slots = [1, 2, 3, 5]
    A('s_add_u32 m0, s%d, %d' % (sWA, 4 * SLOT))
    for c in range(3):
        A('buffer_load_dwordx4 v%d, s[%d:%d], s%d offen offset:%d%s lds' % (vOFF[c], SRD_K, SRD_K + 3, sOffA, c * 1024, polk), vm_id=('pos', 4))
    A('s_add_u32 s%d, s%d, %d' % (sOffA, sOffA, TILE))
    A('s_mov_b32 s%d, s%d' % (sQn, sOc))
    for u in range(2):
        A('s_mov_b32 s%d, %d' % (sT3, slots[u] * SLOT))
        d, dm = q_tile_dma(u, sT3, 0, [None], ('q0', u))
        for x in d:
            x.after = []
        o.extend(d)
    o.extend(late_addr())
    base = [vQA, [TMP, TMP + 1], [TMP + 2, TMP + 3]]
    for j in range(3):
        for m in range(2):
            A('v_add_u32 v%d, s%d, v%d' % (base[j][m], sW6, vKA[m]))
            if j:
                A('v_add_u32 v%d, %d, v%d' % (base[j][m], 2 * j * SLOT, base[j][m]))
    for m in range(2):
        A('v_add_u32 v%d, %d, v%d' % (vKA[m], 4 * SLOT, vKA[m]))
    A('s_mov_b32 s%d, %d' % (sPair, 4 * SLOT))
    A('s_mov_b32 s%d, 0' % sWr)
    o.append(vm_wait([('pos', 4)]))
    A('s_barrier')
    return o


def phase_B03(T):
    chain = [None]
    prog = []
    polk = (' ' + opt.pol_kv) if opt.pol_kv else ''
    slots = [1, 2, 3, 5]
    base = [vQA, [TMP, TMP + 1], [TMP + 2, TMP + 3]]
    kre = [k_read(kt, ks, 0) for kt in range(2) for ks in range(6)]
    for r in kre:
        r.prio = -200000
    prog += kre
    qk = qk_mfmas(T, 0, 'U')

    def later(k):
        seq = [('q', u) for u in range(2, T)] + [('k1',), ('e2',)]
        if k >= len(seq):
            return [], []
        it = seq[k]
        if it[0] == 'q':
            pre = [I('s_mov_b32 s%d, %d' % (sT3, slots[it[1]] * SLOT))]
            chain_seq(pre, chain)
            d, dm = q_tile_dma(it[1], sT3, 0, chain, ('q0', it[1]))
            return pre + d, dm
        if it[0] == 'k1':
            d = [I('s_add_u32 m0, s%d, %d' % (sWA, 4 * SLOT + TILE))]
            dm = [I('buffer_load_dwordx4 v%d, s[%d:%d], s%d offen offset:%d%s lds' % (vOFF[c], SRD_K, SRD_K + 3, sOffA, c * 1024, polk),
                    vm_id=('pos', 5)) for c in range(3)]
            d += dm + [I('s_add_u32 s%d, s%d, %d' % (sOffA, sOffA, TILE))]
            chain_seq(d, chain)
            return d, dm
        return dma_entry(6, chain)
    prev = None
    nxt = 0
    tail_dm = []
    issued = {}
    for u in range(T):
        w = vm_wait([('q0', u)])
        w.prio = -100000
        w.after += prev if prev is not None else kre
        w.after += issued.get(u, [])
        prog.append(w)
        groups = 1 if u < T - 1 else 2
        if u == T - 2:
            groups = 1
        for _ in range(groups):
            d, dm = later(nxt)
            nxt += 1
            for x in dm:
                x.after.append(w)
                x.prio = -190000
                if x.vm_id[0] == 'q0':
                    issued.setdefault(x.vm_id[1], []).append(x)
                else:
                    tail_dm.append(x)
            for x in d:
                if x.kind == 'salu':
                    x.prio = -190000
            prog += d
        rd = [q_read(u, ks, base[slots[u] // 2], (slots[u] % 2) * SLOT) for ks in range(6)]
        for r in rd:
            r.after.append(w)
            r.prio = -95000
        prog += rd
        mine = [m for m in qk if m.tag[3] == u]
        prog += mine
        prev = mine[-1:]
    while True:
        d, dm = later(nxt)
        nxt += 1
        if not d:
            break
        tail_dm += dm
        prog += d
    p = pair_step(sD[1])
    chain_seq(p, chain)
    prog += p
    bl = barrier([('pos', 5)], [qk[-1]] + tail_dm, 0)
    prog += list(bl)
    return prog


def phase_B0(T):
    chain = [None]
    prog = []
    d, dmas = dma_group([6, 7, 8, 9], chain, 0, 16 * 12 * T)
    prog += d
    p = pair_step(sD[1])
    chain_seq(p, chain)
    prog += p
    kre = [k_read(kt, ks, 0) for kt in range(2) for ks in range(6)]
    qk = qk_mfmas(T, 0, 'U' if opt.kring == 12 else 'A')
    prog += with_reads(qk, kre)
    return prog


class Blk:
    def __init__(self, name, parts):
        self.name = name
        self.parts = parts
        self.seq = [x for p in parts for x in p]


PATTERNS = {'alt': [170] * 8, 'mix': [116, 195, 57, 212, 178, 209, 170, 170], 'mix2': [116, 195, 195, 57, 212, 178, 209, 116],
            'sk3': [23, 147, 29, 54, 23, 23, 150, 120], 'sk3b': [23, 147, 116, 54, 195, 57, 150, 120]}
TRAMP = []
FINE = [50, 52, 54, 88, 90, 92, 94, 96, 98, 100]


def site(T, b, name):
    if opt.nocheck:
        return []
    TRAMP.append((name, T, b))
    x = I('s_cbranch_vccnz L_rs_%s\nL_ret_%s:' % (name, name))
    x.prio = -100000
    return [x]


def prof_mark(k):
    return [I('s_memtime s[92:93]'), I('s_waitcnt lgkmcnt(0)'), I('s_sub_u32 s95, s92, s94'),
            I('s_add_u32 s%d, s%d, s95' % (50 + k, 50 + k)), I('s_mov_b32 s94, s92')]


def rt_mark(extra=0):
    return [I('s_memtime s[96:97]' if opt.rt_cycles else 's_memrealtime s[96:97]'), I('s_waitcnt lgkmcnt(0)'), I('v_mov_b32 v30, s96'),
            I('s_lshl_b32 s95, s%d, 2' % sPn), I('s_add_u32 s95, s95, s98'), I('s_add_u32 s95, s95, %d' % extra),
            I('buffer_store_dword v30, off, s[80:83], s95')]


def clone_prog(prog):
    m = {}
    for x in prog:
        y = Inst(x.text, tag=x.tag, prio=x.prio, notbefore=x.notbefore, vm_id=x.vm_id)
        y.kind, y.reads, y.writes, y.floating = x.kind, set(x.reads), set(x.writes), x.floating
        m[id(x)] = y
    for x in prog:
        m[id(x)].after = [m[id(a)] for a in x.after if id(a) in m]
    return [m[id(x)] for x in prog]


def search_schedule(p, hist, urgent_ok, tries):
    import random
    best = None
    pend = []
    for t in range(opt.vlead):
        pend += v_reads(t, 0)
    for k in range(tries):
        q = clone_prog(p)
        s = schedule(q, history=hist, urgent_ok=urgent_ok, jitter=None if k == 0 else (random.Random(1000 + k), 16 + 8 * (k % 8)))
        w, _ = insert_lgkm_waits(s, pending=pend)
        e = estimate(fix_hazards(w, history=hist) + w[:12])
        if best is None or e < best[0]:
            best = (e, s)
    return best[1]


def chain_blocks(parts, tries=1):
    out = []
    for part in parts:
        kind, p = part[0], part[1]
        if kind == 's':
            uo = not (len(part) > 2 and part[2] == 3) and opt.urgent
            if tries > 1:
                out += search_schedule(p, [x for x in out[-24:]], uo, tries)
            else:
                out += schedule(p, history=[x for x in out[-24:]], verbose=opt.verbose, urgent_ok=uo)
            if opt.prof and len(part) > 2:
                out += prof_mark(part[2])
        else:
            out += p
    return out


def NW():
    return opt.wvar if opt.wshift else 1


def build():
    pro = []
    A = lambda t, **kw: pro.append(I(t, **kw))
    prologue(A, pro)
    pro.append(I('s_cmp_eq_u32 s%d, 0' % sT4))
    pro.append(I('s_cbranch_scc1 L_start3'))
    blocks = {}
    for T in (4, 3):
        nm = 'start%d' % T
        if opt.start2 == 3:
            first = [('r', start3_pre(T)), ('s', phase_B03(T)),
                     ('s', phase_C(T, [7, 8, 9], [('pos', 6)], 0, sD[1], True, k_extra=TILE))]
        elif opt.start2:
            first = [('r', start2_pre(T)), ('s', phase_B02(T)),
                     ('s', phase_C(T, [7, 8, 9], [('pos', 6)], 0, sD[1], True, k_extra=TILE))]
        else:
            first = [('r', start_pre(T)), ('s', phase_B0(T)), ('s', phase_C(T, [], [('pos', 6)], 1, sD[1], True))]
        parts = [('r', [I('L_%s:' % nm)])] + first + [
                 ('s', phase_iter(T, 1, 0, True, True, [10], [('pos', 7)], 1, nm + 'a')),
                 ('s', phase_iter(T, 0, 1, False, False, [11], [('pos', 8), ('pos', 9)] if opt.bar_trip else [('pos', 8)], 0, nm + 'b',
                                  kstep=sD[2], vstep=sD[2], pstep=sD[2], bar_mode='trip' if opt.bar_trip else 'normal')),
                 ('r', (prof_mark(0) if opt.prof else []) + [I('s_mov_b32 s%d, 0' % sTrip), I('s_branch L_loop%d' % T)])]
        blocks[nm] = Blk(nm, [chain_blocks(parts)])
        for w in range(NW()):
            sfx = 'w%d' % w
            nm = 'loop%d%s' % (T, sfx)
            mb = I('s_cbranch_scc1 L_mode%d%s\nL_modeback%d%s:' % (T, sfx, T, sfx))
            mb.writes.add(('scc', 0))
            if opt.arr == 1:
                cnt = [I('s_add_u32 s%d, s%d, 1' % (sTrip, sTrip)), I('s_cmp_eq_u32 s%d, 5' % sTrip), mb]
                first = []
            else:
                cnt = [I('s_add_u32 s%d, s%d, 1' % (sTrip, sTrip))]
                first = [I('s_cmp_ge_u32 s%d, 4' % sTrip), mb]
            if opt.touch:
                for k, trip, half in touch_slots(w):
                    t_ = [I('s_cmp_eq_u32 s%d, %d' % (sTrip, trip + half)),
                          I('s_cbranch_scc1 L_touch%d%s_%d\nL_touchback%d%s_%d:' % (T, sfx, k, T, sfx, k))]
                    if half:
                        cnt += t_
                    else:
                        first += t_
            cnt += [I('s_cmp_lt_u32 s%d, 6' % sTrip)]
            head = []
            if w == 0:
                head = [I('L_loop%d:' % T)]
                if NW() == 2:
                    head += [I('s_bitcmp1_b32 s%d, %d' % (sW, opt.wbit)), I('s_cbranch_scc1 L_loop%dw1' % T)]
                else:
                    for k in range(1, NW()):
                        head += [I('s_cmp_eq_u32 s%d, %d' % (sW, k)), I('s_cbranch_scc1 L_loop%dw%d' % (T, k))]
            sh = w * opt.wshift if not opt.wshifts else int(opt.wshifts.split(',')[w])
            parts = [('r', head + [I('.p2align %d' % opt.loop_align)] + [I('s_nop 0') for _ in range(opt.loop_pad)] + [I('L_%s:' % nm)]),
                     ('s', phase_iter(T, 1, 0, False, False, [4], [('pos', 1)], 1, nm + 'a', tail=first or None, shift=sh,
                                      bar_mode='none' if opt.bar_trip else 'normal')),
                     ('s', phase_iter(T, 0, 1, False, False, [5], [('pos', 2), ('pos', 3)] if opt.bar_trip else [('pos', 2)], 0, nm + 'b',
                                      kstep=sD[2], vstep=sD[2], pstep=sD[2], tail=cnt, shift=sh,
                                      bar_mode='trip' if opt.bar_trip else 'normal')),
                     ('r', [I('s_nop 15') for _ in range(opt.padnop)] + [I('s_cbranch_scc1 L_%s' % nm)])]
            ex = (prof_mark(1 if T == 4 else 5) + rt_mark() if opt.prof else []) + [I('s_cmp_ge_u32 s%d, 8' % sPn), I('s_cbranch_scc1 L_end%d' % T)]
            ex += [I('s_cmp_eq_u32 s%d, 0' % sT4), I('s_cbranch_scc1 L_tr%d3' % T), I('s_branch L_tr%d4' % T)]
            parts.append(('r', ex))
            blocks[nm] = Blk(nm, [chain_blocks(parts, opt.tries)])
        nm = 'end%d' % T
        parts = [('r', [I('L_%s:' % nm)]), ('s', (phase_A if opt.arr == 1 else phase_A2)(T, 0, True, nm), 2),
                 ('s', (phase_B if opt.arr == 1 else phase_B2)(T, 0, True), 3),
                 ('r', [I('s_branch L_fin')])]
        blocks[nm] = Blk(nm, [chain_blocks(parts)])
    for T, Tn in ((4, 3), (3, 4), (3, 3), (4, 4)):
        nm = 'tr%d%d' % (T, Tn)
        if opt.arr == 1:
            mid = [('s', phase_A(T, Tn, False, nm + 'A'), 2), ('s', phase_B(T, Tn, False), 3),
                   ('s', phase_C(Tn, [17, 18] if opt.late_e == 1 else [18], [('pos', 16)], 1, sD[3], True, late=list(LATE))),
                   ('s', phase_iter(Tn, 1, 0, True, True, [19, 20], [('pos', 17)], 1, nm + 'a'))]
        else:
            pb = phase_B2(T, Tn, False)
            if opt.merge_bc:
                pc = phase_C(Tn, [18, 19], [('pos', 16)], 1, sD[1], True, after_bar=BARC[0], t_off=opt.merge_t)
                bc = [('s', pb + pc, 3)]
            else:
                bc = [('s', pb, 3), ('s', phase_C(Tn, [17, 18] if opt.e17_in_c else [18, 19], [('pos', 16)], 1, sD[1], True,
                                                    late=[] if opt.defer_it1 else list(LATE)))]
            mid = [('s', phase_A2(T, Tn, False, nm + 'A'), 2)] + bc + [
                   ('s', phase_iter(Tn, 1, 0, True, True, [19, 20] if opt.e17_in_c else [20], [('pos', 17)], 1, nm + 'a',
                                     late=list(LATE) if opt.defer_it1 else []))]
        parts = [('r', [I('L_%s:' % nm)])] + mid + [
                 ('s', phase_iter(Tn, 0, 1, False, False, [21], [('pos', 18), ('pos', 19)] if opt.bar_trip else [('pos', 18)], 0, nm + 'b',
                                  kstep=sD[2], vstep=sD[2], pstep=sD[2], bar_mode='trip' if opt.bar_trip else 'normal')),
                 ('r', [I('s_nop 15') for _ in range(opt.padwin)] + (prof_mark(4) + rt_mark(28) if opt.prof else []) + [I('s_mov_b32 s%d, 0' % sTrip), I('s_branch L_loop%d' % Tn)])]
        blocks[nm] = Blk(nm, [chain_blocks(parts, opt.tries_tr)])

    canon = []
    for t in range(opt.vlead):
        canon += v_reads(t, 0)
    for nm, blk in blocks.items():
        pend = [] if nm.startswith('start') else canon
        blk.seq, _ = insert_lgkm_waits(blk.seq, pending=pend)
    l4 = ['loop4w%d' % w for w in range(NW())]
    l3 = ['loop3w%d' % w for w in range(NW())]
    preds = {'start4': [], 'start3': [], 'end4': l4, 'end3': l3, 'tr43': l4, 'tr34': l3, 'tr33': l3, 'tr44': l4}
    for x in l4:
        preds[x] = ['start4', x, 'tr34', 'tr44']
    for x in l3:
        preds[x] = ['start3', x, 'tr43', 'tr33']
    for nm, blk in blocks.items():
        for p in preds[nm] or [None]:
            hist = blocks[p].seq[-30:] if p else pro[-30:]
            blk.seq = fix_hazards(blk.seq, history=[x for x in hist])
    problems = []
    for nm, blk in blocks.items():
        for p in preds[nm]:
            cat = blocks[p].seq + blk.seq
            problems += check_hazards(cat, p + '+' + nm)
            problems += verify_lgkm(cat, p + '+' + nm)
    if problems:
        for p in problems[:40]:
            print('PROBLEM', p, file=sys.stderr)
        raise SystemExit('hazards found')
    if opt.fine and not opt.fine_vm:
        blk = blocks[opt.fine]
        seq = blk.seq
        lo, hi = opt.fine_lo, min(opt.fine_hi, len(seq))
        pos = [lo + (hi - lo) * k // (len(FINE) - 1) for k in range(len(FINE))]
        out = []
        for i, c in enumerate(seq + [None]):
            for k, p in enumerate(pos):
                if p == i:
                    out.append(I('s_memtime s[%d:%d]' % (FINE[k], FINE[k] + 1)))
                    print('fine stamp %d at instr %d: %s' % (k, i, c.text if c else 'END'), file=sys.stderr)
            if c is not None:
                out.append(c)
        blk.seq = out
    if opt.fine_vm:
        nm, kind, k0 = opt.fine_vm.split(':')
        blk = blocks[nm]
        out = []
        cnt = 0
        k = 0
        for c in blk.seq:
            if c.kind == kind:
                if cnt >= int(k0) and k + 1 < len(FINE):
                    out.append(I('s_memtime s[%d:%d]' % (FINE[k], FINE[k] + 1)))
                    out.append(c)
                    out.append(I('s_memtime s[%d:%d]' % (FINE[k + 1], FINE[k + 1] + 1)))
                    k += 2
                    cnt += 1
                    continue
                cnt += 1
            out.append(c)
        blk.seq = out
        opt.fine = nm
    if opt.waitprof:
        cls = {}
        for nm, blk in blocks.items():
            out = []
            seq = blk.seq
            i = 0
            nth = 0
            while i < len(seq):
                c = seq[i]
                if c.kind == 'wait' and isinstance(c.tag, dict) and 'need' in c.tag:
                    if nm.startswith('loop'):
                        k = 0
                    elif nm.startswith('start'):
                        k = 1
                    elif nm.startswith('end'):
                        k = 1
                    else:
                        k = 2 + nth
                    nth += 1
                    out += [I('s_memtime s[50:51]'), I('s_waitcnt lgkmcnt(0)'), c]
                    if i + 1 < len(seq) and seq[i + 1].kind == 'barrier':
                        i += 1
                        out.append(seq[i])
                    out += [I('s_memtime s[52:53]'), I('s_waitcnt lgkmcnt(0)'), I('s_sub_u32 s54, s52, s50'),
                            I('s_add_u32 s%d, s%d, s54' % (92 + k, 92 + k))]
                else:
                    out.append(c)
                i += 1
            blk.seq = out
    resolve_vm(blocks)
    L = []
    L.append(text_of(fix_hazards(pro)))
    order = ['start4', 'start3'] + l4 + ['tr43', 'tr44'] + l3 + ['tr34', 'tr33', 'end4', 'end3']
    for nm in order:
        L.append(text_of(blocks[nm].seq))
        if opt.verbose:
            s = blocks[nm].seq
            print('%-7s %5d instrs, %4d mfma, est %6d cycles' % (nm, len(s), sum(1 for x in s if x.kind == 'mfma'), estimate(s)), file=sys.stderr)
    fin = [I('L_fin:'), I('s_waitcnt vmcnt(0)')]
    if opt.stamps:
        fin += stamp_code()
    fin += [I('L_end:'), I('s_endpgm')]
    L.append(text_of(fin))
    for T in (4, 3):
        for w in range(NW()):
            L.append(text_of(fix_hazards((mode_code if opt.arr == 1 else mode_code2)(T, 'w%d' % w))))
            if opt.touch:
                for k in range(3):
                    L.append(text_of(fix_hazards(touch_code(T, 'w%d' % w, k))))
        for b in (0, 1):
            L.append(text_of(rare_code(T, b)))
    for name, T, b in TRAMP:
        L.append(text_of([I('L_rs_%s:' % name), I('s_call_b64 s[%d:%d], L_rare%d_%d' % (sRet, sRet + 1, T, b)),
                          I('s_branch L_ret_%s' % name)]))
    return '\n'.join(L)


def stamp_code():
    o = []
    A = lambda t: o.append(I(t))
    A('s_memrealtime s[76:77]')
    A('s_memtime s[78:79]')
    A('s_waitcnt lgkmcnt(0)')
    A('s_mov_b32 s80, s70')
    A('s_and_b32 s81, s71, 0xffff')
    A('s_mov_b32 s82, 0x100000')
    A('s_mov_b32 s83, 0x20000')
    if opt.fine:
        A('s_lshl_b32 s69, s2, 8')
        A('s_lshl_b32 s68, s%d, 6' % sW)
        A('s_add_u32 s69, s69, s68')
        A('s_add_u32 s69, s69, 0x30000')
        A('v_mov_b32 v40, s69')
        for k, r in enumerate(FINE):
            A('v_mov_b32 v42, s%d' % r)
            A('buffer_store_dword v42, v40, s[80:83], 0 offen offset:%d' % (4 * k))
            A('s_nop 1')
    A('s_cmp_eq_u32 s%d, 0' % sW)
    A('s_cbranch_scc0 L_end')
    A('s_lshl_b32 s69, s2, 6')
    A('v_mov_b32 v40, s69')
    for j, sr in enumerate((74, 72, 74, 72, 78, 76)):
        A('v_mov_b32 v42, s%d' % sr)
        A('v_mov_b32 v43, s%d' % (sr + 1))
        A('buffer_store_dwordx2 v[42:43], v40, s[80:83], 0 offen offset:%d' % (8 * j))
        A('s_nop 1')
    if opt.prof:
        A('s_lshl_b32 s84, s2, 5')
        A('s_add_u32 s84, s84, 0x10000')
        A('v_mov_b32 v40, s84')
        for k in range(6):
            A('v_mov_b32 v42, s%d' % (50 + k))
            A('buffer_store_dword v42, v40, s[80:83], 0 offen offset:%d' % (4 * k))
            A('s_nop 1')
    if opt.waitprof:
        A('s_lshl_b32 s69, s2, 6')
        A('s_add_u32 s69, s69, 0x30000')
        A('v_mov_b32 v40, s69')
        for k in range(9):
            A('v_mov_b32 v42, s%d' % (92 + k))
            A('buffer_store_dword v42, v40, s[80:83], 0 offen offset:%d' % (4 * k))
            A('s_nop 1')
    A('s_waitcnt vmcnt(0)')
    return o


def resolve_vm(blocks):
    waits = {}
    progs = set()
    for pat in PATTERNS[opt.patterns]:
        for member in range(4):
            for w in range(4):
                ts = []
                for n in range(8):
                    role = (member + 2 * ((pat >> n) & 1)) & 3
                    ts.append(4 if role == 0 or (role == 1 and w == 0) else 3)
                progs.add((tuple(ts), ((w >> opt.wbit) & 1) if NW() == 2 else w % NW()))
    for Ts, wv in sorted(progs):
        trace = [('start%d' % Ts[0], 0, -1)]
        base = 8
        for p in range(8):
            for k in range(6):
                trace.append(('loop%dw%d' % (Ts[p], wv), base + 2 * k, p))

            if p < 7:
                trace.append(('tr%d%d' % (Ts[p], Ts[p + 1]), base, p))
            else:
                trace.append(('end%d' % Ts[p], base, p))
            base += 18
        q = []
        waited = set()
        for nm, base, p in trace:
            if nm == 'touch':
                q += [('t', p)] * 3
                continue

            def res(i):
                if i[0] == 'pos':
                    return ('pos', base + i[1])
                return tuple(i) + (p,)
            for c in blocks[nm].seq:
                if c.vm_id is not None:
                    if res(c.vm_id) in waited:
                        raise SystemExit('vm id %s issued after a wait that covers it (%s in %s)' % (res(c.vm_id), c.text, nm))
                    q.append(res(c.vm_id))
                if c.kind == 'wait' and isinstance(c.tag, dict) and 'need' in c.tag:
                    need = [res(i) for i in c.tag['need']]
                    waited.update(need)
                    idx = -1
                    for n_ in need:
                        where = [j for j, x in enumerate(q) if x == n_]
                        if not where:
                            if opt.nodma:
                                continue
                            raise SystemExit('vm id %s never issued (%s in %s)' % (n_, c.text, nm))
                        idx = max(idx, where[-1])
                    cnt = sum(1 for x in q[idx + 1:] if opt.vm_inorder or x[0] != 'st')
                    waits.setdefault(id(c), [c, 63])
                    waits[id(c)][1] = min(waits[id(c)][1], cnt)
    for c, n in waits.values():
        c.text = 's_waitcnt vmcnt(%d)' % n


def late_addr():
    o = []
    A = lambda t: o.append(I(t))
    t0, t1, t2, t3, t4 = TMP, TMP + 1, TMP + 2, TMP + 3, TMP + 4
    A('v_and_b32 v%d, 15, v0' % t0)
    A('v_lshrrev_b32 v%d, 4, v0' % t1)
    A('v_lshrrev_b32 v%d, 3, v%d' % (t2, t0))
    A('v_mul_u32_u24 v%d, 3072, v%d' % (vKA[0], t2))
    A('v_and_b32 v%d, 7, v%d' % (t3, t0))
    A('v_lshl_add_u32 v%d, v%d, 7, v%d' % (vKA[0], t3, vKA[0]))
    A('v_bfe_u32 v%d, v%d, 1, 2' % (t3, t0))
    A('v_lshlrev_b32 v%d, 1, v%d' % (t3, t3))
    A('v_mul_u32_u24 v%d, 5, v%d' % (t4, t2))
    A('v_xor_b32 v%d, v%d, v%d' % (t3, t3, t4))
    A('v_xor_b32 v%d, v%d, v%d' % (t3, t3, t1))
    A('v_lshl_add_u32 v%d, v%d, 4, v%d' % (vKA[0], t3, vKA[0]))
    A('v_lshrrev_b32 v%d, 1, v%d' % (t2, t1))
    A('v_mul_u32_u24 v%d, 3072, v%d' % (vVA[0], t2))
    A('v_and_b32 v%d, 1, v%d' % (t3, t1))
    A('v_bfe_u32 v%d, v0, 2, 2' % t4)
    A('v_lshl_add_u32 v%d, v%d, 2, v%d' % (t0, t3, t4))
    A('v_lshl_add_u32 v%d, v%d, 7, v%d' % (vVA[0], t0, vVA[0]))
    A('v_lshrrev_b32 v%d, 1, v%d' % (t0, t0))
    A('v_lshlrev_b32 v%d, 1, v%d' % (t0, t0))
    A('v_mul_u32_u24 v%d, 5, v%d' % (t2, t2))
    A('v_xor_b32 v%d, v%d, v%d' % (t0, t0, t2))
    A('v_bfe_u32 v%d, v0, 1, 1' % t3)
    A('v_xor_b32 v%d, v%d, v%d' % (t0, t0, t3))
    A('v_lshl_add_u32 v%d, v%d, 4, v%d' % (vVA[0], t0, vVA[0]))
    A('v_and_b32 v%d, 1, v0' % t3)
    A('v_lshl_add_u32 v%d, v%d, 3, v%d' % (vVA[0], t3, vVA[0]))
    A('v_add_u32 v%d, %d, v%d' % (vVA[0], TILE, vVA[0]))
    A('v_lshrrev_b32 v%d, 3, v0' % t0)
    A('v_and_b32 v%d, 15, v0' % t1)
    A('v_lshrrev_b32 v%d, 4, v0' % t2)
    A('v_lshrrev_b32 v%d, 1, v%d' % (t3, t2))
    A('v_and_b32 v%d, 7, v%d' % (t4, t1))
    A('v_xor_b32 v%d, v%d, v%d' % (t3, t3, t4))
    A('v_lshlrev_b32 v%d, 7, v%d' % (vOW, t1))
    A('v_lshl_add_u32 v%d, v%d, 4, v%d' % (vOW, t3, vOW))
    A('v_and_b32 v%d, 1, v%d' % (t2, t2))
    A('v_lshl_add_u32 v%d, v%d, 3, v%d' % (vOW, t2, vOW))
    A('s_lshl_b32 s%d, s%d, 12' % (sT1, sW))
    A('s_add_u32 s%d, s%d, %d' % (sT1, sT1, OSTAGE))
    A('v_add_u32 v%d, s%d, v%d' % (vOW, sT1, vOW))
    A('v_and_b32 v%d, 7, v0' % t1)
    A('v_xor_b32 v%d, v%d, v%d' % (t2, t1, t0))
    A('v_lshlrev_b32 v%d, 7, v%d' % (vOR, t0))
    A('v_lshl_add_u32 v%d, v%d, 4, v%d' % (vOR, t2, vOR))
    A('v_add_u32 v%d, s%d, v%d' % (vOR, sT1, vOR))
    A('v_mul_u32_u24 v%d, 384, v%d' % (vOG, t0))
    A('v_lshl_add_u32 v%d, v%d, 4, v%d' % (vOG, t1, vOG))
    for i in range(4):
        A('v_mov_b32 v%d, 0x3f803f80' % (vONES + i))
    for m in range(1, 2):
        A('v_xor_b32 v%d, 64, v%d' % (vKA[1], vKA[0]))
    for m in range(1, 4):
        A('v_xor_b32 v%d, %d, v%d' % (vVA[m], 32 * m, vVA[0]))
    return o


def prologue(A, pro):
    A('s_cmp_ge_u32 s2, 256')
    A('s_cbranch_scc1 L_end')
    if opt.active_j < 32:
        A('s_lshr_b32 s3, s2, 3')
        A('s_cmp_ge_u32 s3, %d' % opt.active_j)
        A('s_cbranch_scc1 L_end')
    if opt.active < 8:
        A('s_and_b32 s3, s2, 7')
        A('s_cmp_ge_u32 s3, %d' % opt.active)
        A('s_cbranch_scc1 L_end')
    A('s_load_dwordx4 s[84:87], s[0:1], 0')
    A('s_load_dwordx4 s[88:91], s[0:1], 16')
    if opt.stamps:
        A('s_load_dwordx2 s[70:71], s[0:1], 40')
        A('s_memrealtime s[72:73]')
        A('s_memtime s[74:75]')
    if opt.waitprof:
        for k in range(9):
            A('s_mov_b32 s%d, 0' % (92 + k))
    if opt.prof:
        for k in range(6):
            A('s_mov_b32 s%d, 0' % (50 + k))
        A('s_memtime s[92:93]')
        A('s_waitcnt lgkmcnt(0)')
        A('s_mov_b32 s94, s92')
        A('s_mov_b32 s80, s70')
        A('s_and_b32 s81, s71, 0xffff')
        A('s_mov_b32 s82, 0x100000')
        A('s_mov_b32 s83, 0x20000')
        A('s_lshl_b32 s98, s2, 8')
        A('s_add_u32 s98, s98, 0x20000')
        A('v_lshrrev_b32 v30, 6, v0')
        A('s_nop 1')
        A('v_readfirstlane_b32 s99, v30')
        A('s_nop 4')
        A('s_lshl_b32 s99, s99, 6')
        A('s_add_u32 s98, s98, s99')
    A('v_lshrrev_b32 v%d, 6, v0' % vX[0])
    A('v_and_b32 v0, 63, v0')
    A('v_readfirstlane_b32 s%d, v%d' % (sW, vX[0]))
    t0, t1, t2, t3, t4 = TMP, TMP + 1, TMP + 2, TMP + 3, TMP + 4
    A('v_lshrrev_b32 v%d, 3, v0' % t0)
    A('v_mul_u32_u24 v%d, 384, v%d' % (vOFF[0], t0))
    A('v_lshrrev_b32 v%d, 1, v%d' % (t1, t0))
    A('v_lshlrev_b32 v%d, 1, v%d' % (t1, t1))
    A('v_and_b32 v%d, 7, v0' % t2)
    A('v_xor_b32 v%d, v%d, v%d' % (t1, t1, t2))
    A('s_and_b32 s%d, s%d, 1' % (sT0, sW))
    A('s_mul_i32 s%d, s%d, 5' % (sT0, sT0))
    A('v_xor_b32 v%d, s%d, v%d' % (t1, sT0, t1))
    A('v_lshl_add_u32 v%d, v%d, 4, v%d' % (vOFF[0], t1, vOFF[0]))
    A('v_add_u32 v%d, %d, v%d' % (vOFF[0], BIAS, vOFF[0]))
    A('v_subrev_u32 v%d, 896, v%d' % (vOFF[1], vOFF[0]))
    A('v_subrev_u32 v%d, 1792, v%d' % (vOFF[2], vOFF[0]))
    for c in range(3):
        A('v_mov_b32 v%d, v%d' % (vB[c], vOFF[c]))
    A('s_mov_b32 s%d, 0x3dd53b95' % sC)
    A('s_mov_b32 s%d, 0x%x' % (sThr, opt.thr))
    A('s_and_b32 s%d, s2, 7' % sT0)
    A('s_lshr_b32 s%d, s2, 3' % sT1)
    A('s_and_b32 s%d, s%d, 3' % (sMember, sT1))
    A('s_lshr_b32 s%d, s%d, 2' % (sT1, sT1))
    A('s_mov_b32 s%d, s%d' % (sGroup, sT1))
    A('s_lshl_b32 s%d, s%d, 3' % (sT0, sT0))
    A('s_add_u32 s%d, s%d, s%d' % (sT0, sT0, sT1))
    A('s_lshl_b32 s%d, s%d, 3' % (sT2, sT0))
    A('s_waitcnt lgkmcnt(0)')
    A('s_mul_i32 s%d, s%d, %d' % (sT3, sT2, KHEAD))
    for srd, p, n in ((SRD_Q, 84, None), (SRD_K, 86, None), (SRD_V, 88, None)):
        A('s_sub_u32 s%d, s%d, %d' % (srd, p, BIAS))
        A('s_subb_u32 s%d, s%d, 0' % (srd + 1, p + 1))
        A('s_and_b32 s%d, s%d, 0xffff' % (srd + 1, srd + 1))
        A('s_mov_b32 s%d, 0x20000' % (srd + 3))
    A('s_mov_b32 s%d, %d' % (SRD_Q + 2, (QBYTES + BIAS) if not opt.noq else 0))
    A('s_add_u32 s%d, s%d, %d' % (SRD_K + 2, sT3, 8 * KHEAD + BIAS))
    A('s_mov_b32 s%d, s%d' % (SRD_V + 2, SRD_K + 2))
    A('s_mov_b32 s%d, s90' % SRD_O)
    A('s_and_b32 s%d, s91, 0xffff' % (SRD_O + 1))
    A('s_mov_b32 s%d, %d' % (SRD_O + 2, QBYTES))
    A('s_mov_b32 s%d, 0x20000' % (SRD_O + 3))
    for i in range(4):
        A('s_mov_b32 s%d, s%d' % (SRD_A + i, SRD_K + i))
        A('s_mov_b32 s%d, s%d' % (SRD_B + i, SRD_V + i))
    A('s_mul_i32 s%d, s%d, 3072' % (sWA, sW))
    A('s_add_u32 s%d, s%d, %d' % (sWB, sWA, TILE))
    A('s_mul_i32 s%d, s%d, 6144' % (sW6, sW))
    A('s_add_u32 s%d, s%d, s%d' % (sOffA, sT3, sWA))
    A('s_mov_b32 s%d, s%d' % (sOffB, sOffA))
    A('s_mov_b32 s%d, %d' % (sStride, 0 if opt.kvfix else TILE))
    A('s_mul_i32 s%d, s%d, %d' % (sHeadQ, sT2, QHEAD))
    A('s_mov_b32 s%d, 0' % sPn)
    pats = PATTERNS[opt.patterns]
    A('s_mov_b32 s%d, 0x%x' % (sT0, sum(pats[g] << (8 * g) for g in range(4))))
    A('s_mov_b32 s%d, 0x%x' % (sT1, sum(pats[4 + g] << (8 * g) for g in range(4))))
    A('s_lshl_b32 s%d, s%d, 3' % (sT2, sGroup))
    A('s_lshr_b64 s[%d:%d], s[%d:%d], s%d' % (sT0, sT0 + 1, sT0, sT0 + 1, sT2))
    A('s_and_b32 s%d, s%d, 0xff' % (sPat, sT0))
    pro += qoff_calc(sOc)


HEADER = """; Kernarg layout (48 bytes): q, k, v, out, debug, ws
; @launch grid=(256,1,1) block=(256,1,1) lds=%d
.amdgcn_target "amdgcn-amd-amdhsa--gfx950"
.text
.globl %s
.p2align 8
.type %s,@function
%s:
"""
FOOTER = """
.section .rodata,"a"
.p2align 6
.amdhsa_kernel %s
  .amdhsa_next_free_vgpr 512
  .amdhsa_next_free_sgpr 102
  .amdhsa_accum_offset 256
  .amdhsa_group_segment_fixed_size 0
  .amdhsa_kernarg_size 48
  .amdhsa_user_sgpr_count 2
  .amdhsa_user_sgpr_kernarg_segment_ptr 1
  .amdhsa_system_sgpr_workgroup_id_x 1
.end_amdhsa_kernel
"""


def main():
    ap = argparse.ArgumentParser()
    ap.add_argument('-o', default='standalone__gqa_softmax__near_ridge.s')
    ap.add_argument('--set', action='append', default=[])
    a = ap.parse_args()
    for kv in a.set:
        k, v = kv.split('=', 1)
        cur = getattr(opt, k)
        if isinstance(cur, bool):
            v = v not in ('0', 'False', '')
        elif isinstance(cur, int):
            v = int(v, 0)
        elif isinstance(cur, float):
            v = float(v)
        setattr(opt, k, v)
    asmlib.LDS_LAT = opt.lds_lat
    asmlib.FILL_LOOKAHEAD = opt.fill
    asmlib.FILL_SLACK = opt.fill_slack
    asmlib.LDSW = opt.ldsw
    asmlib.STGAP = opt.stgap
    asmlib.WAIT_LAT = opt.wait_lat
    global VF
    VF = KF + 4 * opt.kring
    assert VF + 4 * opt.vring <= 256
    body = build()
    txt = HEADER % (LDS_BYTES, NAME, NAME, NAME) + body + FOOTER % NAME
    open(a.o, 'w').write(txt)
    print('wrote %s (%d bytes)' % (a.o, len(txt)), file=sys.stderr)


if __name__ == '__main__':
    main()
```

```python
from common import *
T=5
def gen(tag,qk="A",pv="tu",sums="none",iters=88,swapqk=False,swappv=False,zero="",off="-2.0",scale=None):
    L=[];A=L.append
    A("s_cmp_ge_u32 s2, 256"); A(f"s_cbranch_scc1 L_end{tag}")
    A("s_load_dwordx4 s[4:7], s[0:1], 0"); A("s_load_dwordx2 s[10:11], s[0:1], 16"); A("s_load_dwordx2 s[8:9], s[0:1], 40")
    A("s_memtime s[40:41]"); A("s_memrealtime s[42:43]")
    A("v_lshlrev_b32 v1, 4, v0"); A("s_waitcnt lgkmcnt(0)")
    for d,s,n in ((16,4,166723584),(28,6,100663296),(32,10,100663296)):
        A(f"s_mov_b32 s{d}, s{s}"); A(f"s_and_b32 s{d+1}, s{s+1}, 0xffff"); A(f"s_mov_b32 s{d+2}, {n}"); A(f"s_mov_b32 s{d+3}, 0x20000")
    A("s_mul_i32 s13, s2, 651264"); A("s_mul_i32 s15, s2, 393216")
    for i in range(30):
        A(f"s_add_u32 s14, s13, {i*4096}"); A(f"buffer_load_dwordx4 a[{136+4*i}:{139+4*i}], v1, s[16:19], s14 offen")
    for i in range(12):
        A(f"s_add_u32 s14, s15, {i*4096}"); A(f"buffer_load_dwordx4 v[{8+4*i}:{11+4*i}], v1, s[28:31], s14 offen")
        A(f"buffer_load_dwordx4 v[{56+4*i}:{59+4*i}], v1, s[32:35], s14 offen")
    for i in range(5):
        A(f"s_add_u32 s14, s13, {(30+i)*4096}"); A(f"buffer_load_dwordx4 v[{104+4*i}:{107+4*i}], v1, s[16:19], s14 offen")
    A("s_waitcnt vmcnt(0)")
    for r in range(104,124):
        A(f"v_lshlrev_b32 v2, 16, v{r}"); A(f"v_and_b32 v3, 0xffff0000, v{r}"); A(f"v_add_f32 v2, {off}, v2"); A(f"v_add_f32 v3, {off}, v3")
        A("v_exp_f32 v2, v2"); A("v_exp_f32 v3, v3"); A("s_nop 1"); A(f"v_cvt_pk_bf16_f32 v{r}, v2, v3")
    for i in range(136): A(f"v_accvgpr_write_b32 a{i}, 0")
    for i in range(124,256): A(f"v_mov_b32 v{i}, 0")
    for i in range(4): A(f"v_mov_b32 v{4+i}, 0x3f803f80")
    A("v_mov_b32 v3, 0x4444")
    if "k" in zero:
        for i in range(8,56): A(f"v_mov_b32 v{i}, 0")
    if "v" in zero:
        for i in range(56,104): A(f"v_mov_b32 v{i}, 0")
    A(f"s_mov_b32 s20, {iters}"); A("s_barrier")
    A("s_memtime s[44:45]"); A("s_memrealtime s[46:47]"); A("s_waitcnt lgkmcnt(0)")
    A(".p2align 6"); A(f"L_loop{tag}:")
    def O(u,t):
        i=(u*12+t)%57
        return f"a[{4*i}:{4*i+3}]" if i<34 else f"v[{164+4*(i-34)}:{167+4*(i-34)}]"
    if pv=="tu": seq=[(t,u) for t in range(12) for u in range(T)]
    elif pv=="ut": seq=[(t,u) for u in range(T) for t in range(12)]
    elif pv=="b4": seq=[(t,u) for b in range(3) for u in range(T) for t in range(4*b,4*b+4)]
    elif pv=="b2": seq=[(t,u) for b in range(6) for u in range(T) for t in range(2*b,2*b+2)]
    elif pv=="snake": seq=[(t,u) for t in range(12) for u in (range(T) if t%2==0 else reversed(range(T)))]
    elif pv=="b2s": seq=[(t,u) for b in range(6) for u in (range(T) if b%2==0 else reversed(range(T))) for t in (range(2*b,2*b+2) if u%2==0 else reversed(range(2*b,2*b+2)))]
    elif pv=="ch2": seq=[(t,u) for b in range(6) for u in range(T) for t in range(2*b,2*b+2)]
    for t,u in seq:
        if pv=="ch2":
            a,b=f"v[{56+4*t}:{59+4*t}]",f"v[{104+4*((u+t)%T)}:{107+4*((u+t)%T)}]"
            if swappv:a,b=b,a
            o=O(u,(t//2)*2)
            A(f"v_mfma_f32_16x16x32_bf16 {o}, {a}, {b}, {o}"); continue
        a,b=f"v[{56+4*t}:{59+4*t}]",f"v[{104+4*u}:{107+4*u}]"
        if swappv:a,b=b,a
        A(f"v_mfma_f32_16x16x32_bf16 {O(u,t)}, {a}, {b}, {O(u,t)}")
    if sums=="mfma":
        for u in range(T): A(f"v_mfma_f32_16x16x32_bf16 v[252:255], v[4:7], v[{104+4*u}:{107+4*u}], v[252:255]")
    if sums=="sm":
        for u in (0,2,3): A(f"v_smfmac_f32_16x16x64_bf16 v[252:255], v[4:7], v[{104+4*u}:{111+4*u}], v3")
    if qk=="A": seq=[(kt,ks,u) for kt in range(2) for ks in range(6) for u in range(T)]
    elif qk=="C": seq=[(kt,ks,u) for kt in range(2) for u in range(T) for ks in range(6)]
    elif qk=="B": seq=[(kt,ks,u) for ks in range(6) for u in range(T) for kt in range(2)]
    elif qk=="C2": seq=[(kt,ks,u) for kt in range(2) for h in range(2) for u in range(T) for ks in range(3*h,3*h+3)]
    elif qk=="As": seq=[(kt,ks,u) for kt in range(2) for ks in range(6) for u in (range(T) if ks%2==0 else reversed(range(T)))]
    elif qk=="Cs": seq=[(kt,ks,u) for kt in range(2) for u in range(T) for ks in (range(6) if u%2==0 else reversed(range(6)))]
    elif qk=="U": seq=[(kt,ks,u) for u in range(T) for kt in range(2) for ks in range(6)]
    elif qk=="Us": seq=[(kt,ks,u) for u in range(T) for kt in range(2) for ks in (range(6) if kt%2==0 else reversed(range(6)))]
    seen=set()
    for kt,ks,u in seq:
        s=124+8*u+4*kt; q=136+4*(6*u+ks); k=8+4*(6*kt+ks)
        a,b=f"v[{k}:{k+3}]",f"a[{q}:{q+3}]"
        if swapqk:a,b=b,a
        A(f"v_mfma_f32_16x16x32_bf16 v[{s}:{s+3}], {a}, {b}, "+(f"v[{s}:{s+3}]" if s in seen else "0")); seen.add(s)
    A("s_sub_u32 s20, s20, 1"); A("s_cmp_lg_u32 s20, 0"); A(f"s_cbranch_scc1 L_loop{tag}")
    A("s_memtime s[48:49]"); A("s_memrealtime s[50:51]"); A("s_waitcnt lgkmcnt(0)")
    A("v_cmp_eq_u32 vcc, 0, v0"); A("s_and_saveexec_b64 s[22:23], vcc"); A(f"s_cbranch_execz L_end{tag}")
    A("s_lshl_b32 s21, s2, 6"); A("v_mov_b32 v2, s21")
    A("s_mov_b32 s24, s8"); A("s_and_b32 s25, s9, 0xffff"); A("s_mov_b32 s26, 0x100000"); A("s_mov_b32 s27, 0x20000")
    for j,sr in enumerate((44,46,44,46,48,50)):
        A(f"v_mov_b32 v4, s{sr}"); A(f"v_mov_b32 v5, s{sr+1}"); A(f"buffer_store_dwordx2 v[4:5], v2, s[24:27], 0 offen offset:{8*j}"); A("s_nop 1")
    A("s_waitcnt vmcnt(0)"); A(f"L_end{tag}:"); A("s_endpgm")
    return "\n".join(L)
B=dict(qk="Cs",pv="b2s")
V={"base":B,"swp":dict(B,swappv=True),"ch2":dict(B,pv="ch2"),"ch2swp":dict(B,pv="ch2",swappv=True),
 "off0":dict(B,off="0"),"off4":dict(B,off="-4.0"),"off9":dict(B,off="0xc1100000"),"off18":dict(B,off="0xc1900000"),
 "swoff0":dict(B,off="0",swappv=True),"swoff4":dict(B,off="-4.0",swappv=True),"swoff9":dict(B,off="0xc1100000",swappv=True),"base2":B}
build("mpow",[(k+"_kernel",gen(k,**v),dict(vgpr=256,agpr_off=256,total=512)) for k,v in V.items()])
open("mpow.list","w").write(" ".join(V))
```

```python
import re

REG_RE = re.compile(r'^(-|abs\()?([vas])(\d+)\)?$')
RANGE_RE = re.compile(r'^(-)?([vas])\[(\d+):(\d+)\]$')


def regs_of(op):
    op = op.strip()
    m = RANGE_RE.match(op)
    if m:
        return [(m.group(2), i) for i in range(int(m.group(3)), int(m.group(4)) + 1)]
    m = REG_RE.match(op)
    if m:
        return [(m.group(2), int(m.group(3)))]
    if op in ('vcc', 'exec', 'm0', 'scc'):
        return [(op, 0)]
    if op in ('vcc_lo', 'vcc_hi'):
        return [('vcc', 0)]
    if op in ('exec_lo', 'exec_hi'):
        return [('exec', 0)]
    return []


TRANS = ('v_exp_f32', 'v_rcp_f32', 'v_log_f32', 'v_rsq_f32', 'v_sqrt_f32')
SWAPS = ('v_permlane16_swap_b32', 'v_permlane32_swap_b32')
RMW = ('v_fmac_f32',)


class Inst:
    __slots__ = ('text', 'op', 'kind', 'reads', 'writes', 'tag', 'prio', 'notbefore', 'deps', 'idx', 'after',
                 'lat', 'vm_id', 'srcc', 'srcab', 'note', 'floating', 'glue')

    def __init__(self, text, tag=None, prio=0.0, notbefore=0, vm_id=None):
        self.text = text
        self.tag = tag
        self.prio = prio
        self.notbefore = notbefore
        self.vm_id = vm_id
        self.after = []
        self.srcc = set()
        self.srcab = set()
        self.floating = False
        self.glue = None
        self.parse()

    def parse(self):
        t = self.text.split('\n')[0].split(';')[0].strip()
        t = re.sub(r'\s+op_sel(_hi)?:\[[01,]*\]', '', t)
        t = re.sub(r'\s+offset[01]:\d+', '', t)
        parts = t.split(None, 1)
        op = parts[0]
        self.op = op
        rest = parts[1] if len(parts) > 1 else ''
        ops = [x.strip() for x in rest.split(',')] if rest else []
        last_mods = ''
        if ops:
            sp = ops[-1].split(None, 1)
            if op.startswith('s_waitcnt') or op.startswith('s_nop') or op.startswith('s_cbranch') or op.startswith('s_branch') or op == 's_call_b64':
                pass
            elif len(sp) > 1:
                ops[-1] = sp[0]
                last_mods = sp[1]
        R = set()
        W = set()
        base = op.replace('_e32', '').replace('_e64', '').replace('_dpp', '')
        if op.endswith(':'):
            self.kind = 'label'
        elif op.startswith('v_mfma'):
            self.kind = 'mfma'
            W |= set(regs_of(ops[0]))
            self.srcab = set(regs_of(ops[1])) | set(regs_of(ops[2]))
            self.srcc = set(regs_of(ops[3]))
            R |= self.srcab | self.srcc
        elif op.startswith('v_smfmac'):
            self.kind = 'mfma'
            W |= set(regs_of(ops[0]))
            self.srcab = set(regs_of(ops[1])) | set(regs_of(ops[2])) | set(regs_of(ops[3]))
            self.srcc = set(regs_of(ops[0]))
            R |= self.srcab | self.srcc
        elif op.startswith('ds_read'):
            self.kind = 'ds'
            W |= set(regs_of(ops[0]))
            R |= set(regs_of(ops[1]))
        elif op.startswith('ds_write'):
            self.kind = 'ds'
            for o in ops:
                R |= set(regs_of(o))
        elif op.startswith('buffer_load'):
            mods = last_mods.split()
            if 'lds' in mods:
                self.kind = 'dma'
                for o in ops:
                    R |= set(regs_of(o))
                R.add(('m0', 0))
            else:
                self.kind = 'vld'
                W |= set(regs_of(ops[0]))
                for o in ops[1:]:
                    R |= set(regs_of(o))
        elif op.startswith('global_load'):
            self.kind = 'vld'
            W |= set(regs_of(ops[0]))
            for o in ops[1:]:
                R |= set(regs_of(o))
        elif op.startswith('buffer_store'):
            self.kind = 'vst'
            ops = [o for o in ops if o != 'off']
            for o in ops:
                R |= set(regs_of(o))
        elif op.startswith('v_cmp'):
            self.kind = 'valu'
            W |= set(regs_of(ops[0]))
            for o in ops[1:]:
                R |= set(regs_of(o))
        elif base in SWAPS:
            self.kind = 'valu'
            for o in ops[:2]:
                R |= set(regs_of(o))
                W |= set(regs_of(o))
        elif op.startswith('v_readfirstlane') or op.startswith('v_readlane'):
            self.kind = 'valu'
            W |= set(regs_of(ops[0]))
            for o in ops[1:]:
                R |= set(regs_of(o))
        elif op.startswith('v_'):
            self.kind = 'trans' if base in TRANS else 'valu'
            W |= set(regs_of(ops[0]))
            start = 1
            if base in ('v_add_co_u32', 'v_addc_co_u32', 'v_sub_co_u32'):
                W |= set(regs_of(ops[1]))
                start = 2
            for o in ops[start:]:
                R |= set(regs_of(o))
            if base in RMW or 'DPPMERGE' in self.text:
                R |= set(regs_of(ops[0]))
            if base == 'v_cndmask_b32' and len(ops) == 3:
                R.add(('vcc', 0))
        elif op == 's_waitcnt':
            self.kind = 'wait'
        elif op == 's_nop':
            self.kind = 'nop'
        elif op == 's_barrier':
            self.kind = 'barrier'
        elif op.startswith('s_cbranch') or op in ('s_branch', 's_call_b64', 's_setpc_b64'):
            self.kind = 'branch'
            if 'vcc' in op:
                R.add(('vcc', 0))
            if 'scc' in op:
                R.add(('scc', 0))
            if 'exec' in op:
                R.add(('exec', 0))
        elif op == 's_endpgm' or op == 's_setprio' or op == 's_sleep':
            self.kind = 'misc'
        elif op.startswith('s_load') or op.startswith('s_memtime') or op.startswith('s_memrealtime'):
            self.kind = 'smem'
            W |= set(regs_of(ops[0]))
            for o in ops[1:]:
                R |= set(regs_of(o))
        elif op.startswith('s_cmp') or op.startswith('s_bitcmp'):
            self.kind = 'salu'
            for o in ops:
                R |= set(regs_of(o))
            W.add(('scc', 0))
        elif op.startswith('s_'):
            self.kind = 'salu'
            W |= set(regs_of(ops[0]))
            for o in ops[1:]:
                R |= set(regs_of(o))
            if base in ('s_add_u32', 's_sub_u32', 's_addc_u32', 's_subb_u32', 's_and_b32', 's_or_b32', 's_xor_b32',
                        's_lshl_b32', 's_lshr_b32', 's_and_b64', 's_or_b64', 's_add_i32', 's_sub_i32', 's_min_u32',
                        's_max_u32', 's_and_saveexec_b64', 's_andn2_b64', 's_addk_i32'):
                W.add(('scc', 0))
            if base in ('s_addc_u32', 's_subb_u32', 's_cselect_b32', 's_cselect_b64'):
                R.add(('scc', 0))
            if base == 's_addk_i32':
                R |= set(regs_of(ops[0]))
            if base == 's_and_saveexec_b64':
                W.add(('exec', 0))
                R.add(('exec', 0))
        elif op.startswith('.'):
            self.kind = 'directive'
        else:
            raise ValueError('unknown instruction: ' + self.text)
        self.reads = R
        self.writes = W

    def __repr__(self):
        return self.text


VEC_VALU = ('valu', 'trans', 'mfma')
MEM = ('ds', 'dma', 'vld', 'vst')
SCALAR = ('salu', 'wait', 'nop', 'barrier', 'branch', 'misc', 'smem')


def is_vreg(r):
    return r[0] in ('v', 'a')


def need_states(p, c):
    n = 0
    if p.kind == 'mfma':
        d = p.writes
        if c.kind == 'mfma':
            if c.srcab & d:
                n = max(n, 8)
            if c.srcc & d:
                if c.srcc != d:
                    n = max(n, 6)
            if (c.writes & d) and c.writes != d:
                n = max(n, 6)
        elif c.kind in ('valu', 'trans'):
            if (c.reads & d) or (c.writes & d):
                n = max(n, 8)
            if c.writes & p.srcc:
                n = max(n, 3)
        elif c.kind in MEM:
            if (c.reads & d) or (c.writes & d):
                n = max(n, 8)
    elif p.kind in ('valu', 'trans'):
        vw = {r for r in p.writes if is_vreg(r)}
        sw = p.writes - vw
        if c.kind == 'mfma' and (c.reads & vw):
            n = max(n, 2)
        if p.kind == 'trans' and c.kind in ('valu', 'trans', 'mfma') + MEM and (c.reads & vw):
            n = max(n, 1)
        if 'op_sel' in p.text and c.kind in ('valu', 'trans', 'mfma') + MEM and ((c.reads | c.writes) & vw):
            n = max(n, 1)
        if p.op.startswith('v_pk_') and c.kind == 'mfma':
            n = max(n, 2)
        cb = c.op.replace('_e32', '')
        if cb in SWAPS and (c.reads & vw):
            n = max(n, 2)
        if (c.op.startswith('v_readfirstlane') or c.op.startswith('v_readlane')) and (c.reads & vw):
            n = max(n, 1)
        if 'row_' in c.text and (c.reads & vw):
            n = max(n, 2)
        if sw:
            if c.kind in ('valu', 'trans') and (c.reads & sw):
                n = max(n, 2)
            if c.kind in ('dma', 'vld', 'vst') and (c.reads & sw):
                n = max(n, 5)
            if c.kind == 'branch' and (c.reads & sw):
                n = max(n, 5)
            if c.kind == 'salu' and (c.reads & sw):
                n = max(n, 4)
    elif p.kind == 'vst':
        if p.op.endswith('x4') or p.op.endswith('x3'):
            data = {r for r in p.reads if is_vreg(r)}
            if c.kind in ('valu', 'trans') and (c.writes & data):
                n = max(n, 2)
            elif c.writes & data:
                n = max(n, 1)
    elif p.kind == 'salu':
        if ('m0', 0) in p.writes and c.kind == 'dma':
            n = max(n, 1)
    return n


def states_of(i):
    if i.kind == 'nop':
        return int(i.text.split()[1]) + 1
    if i.kind in ('label', 'directive'):
        return 0
    return 1


MAX_STATES = 8


def check_hazards(seq, name=''):
    bad = []
    for j, c in enumerate(seq):
        if c.kind in ('label', 'directive', 'wait', 'nop', 'barrier'):
            continue
        dist = 0
        k = j - 1
        while k >= 0 and dist < MAX_STATES:
            p = seq[k]
            n = need_states(p, c)
            if n > dist:
                bad.append((name, k, p.text, j, c.text, n, dist))
            dist += states_of(p)
            k -= 1
    return bad


def fix_hazards(seq, history=()):
    out = []
    hist = list(history)[-24:]
    for c in seq:
        if c.kind not in ('label', 'directive', 'wait', 'nop', 'barrier'):
            ctx = hist + out[-24:]
            dist = 0
            need = 0
            k = len(ctx) - 1
            while k >= 0 and dist < MAX_STATES:
                n = need_states(ctx[k], c)
                need = max(need, n - dist)
                dist += states_of(ctx[k])
                k -= 1
            if need > 0:
                out.append(Inst('s_nop %d' % (need - 1)))
        out.append(c)
    return out


LDS_LAT = 160
LDSW = 12
LDSW2 = 12
STW = 0
DMAD = 12
DMAW = 0
DMAV = 0
BAR = 16
LDS_OCC = 0
LDS_Q = 0
STGAP = 120
WAIT_LAT = 160


def issue_time(prev_kind, prev_t, c, st):
    t = st['slot']
    k = c.kind
    if k in VEC_VALU:
        t = max(t, st['vec_free'])
        if c.op.startswith('v_pk_'):
            t = max(t, st['mfma_free'] + 12)
        if k == 'mfma':
            t = max(t, st['mfma_free'], st['mfma_lock'])
    elif k in MEM:
        t = max(t, st['vec_free'])
        if k == 'ds':
            t = max(t, st['ww_free'] if c.op.startswith('ds_write') else st['wr_free'])
            if LDS_OCC:
                t = max(t, st['lds_busy'] - LDS_Q)
        else:
            t = max(t, st['salu_t'] + 8)
            if not (k == 'dma' and st['last_kind'] == 'vst' and t == st['slot']):
                t = max(t, st['wv_free'])
        if k == 'vst':
            t = max(t, st['st_free'])
        if st['last_valu_end'] is not None:
            t = max(t, st['last_valu_end'] + 8)
    return t


def commit(c, t, st):
    k = c.kind
    dur = 4 * states_of(c) if k == 'nop' else BAR if k == 'barrier' else 4
    st['last_kind'] = k
    if k == 'mfma':
        st['vec_by_mfma'] = True
    elif k not in SCALAR:
        st['vec_by_mfma'] = False
    if k == 'mfma':
        st['vec_free'] = t + (12 if c.op.startswith('v_smfmac') else 8)
        st['mfma_free'] = t + 16
    elif k == 'salu':
        st['salu_t'] = t
    elif k == 'valu' or k == 'trans':
        dur = 8 if k == 'trans' or c.op.replace('_e32', '') in SWAPS else 4
        st['vec_free'] = t + dur
        st['last_valu_end'] = t + dur
    elif k == 'ds':
        if c.op.startswith('ds_write'):
            one = c.op in ('ds_write_b64', 'ds_write2_b32', 'ds_write_b32')
            dur = 12 if one else 20
            st['ww_free'] = t + (LDSW2 // 2 if one else LDSW2)
            st['wr_free'] = t + (LDSW // 2 if one else LDSW)
            st['wv_free'] = max(st['wv_free'], st['wr_free'])
        if LDS_OCC:
            st['lds_busy'] = max(st['lds_busy'], t) + LDS_OCC * (4 if c.op.endswith('b128') else 8 if 'write2' in c.op else 4 if 'write' in c.op else 2)
        st['vec_free'] = t + dur
    elif k == 'vst':
        dur = 8
        st['st_free'] = t + STGAP
        st['wv_free'] = max(st['wv_free'], t + STW)
        st['ww_free'] = max(st['ww_free'], t + STW)
        st['mfma_lock'] = t + 20
        st['vec_free'] = t + 8
    elif k in MEM:
        dur = DMAD
        st['vec_free'] = t + dur
        st['ww_free'] = max(st['ww_free'], t + DMAW)
        st['wv_free'] = max(st['wv_free'], t + DMAV)
    st['slot'] = t + dur


def new_state():
    return dict(slot=0, vec_free=0, mfma_free=-100, last_valu_end=None, last_kind=None, vec_by_mfma=False, ww_free=0, wr_free=0,
                wv_free=0, st_free=0, lds_busy=0, mfma_lock=0, salu_t=-100)


def estimate(seq):
    st = new_state()
    t = 0
    for c in seq:
        if c.kind in ('label', 'directive'):
            continue
        t = issue_time(None, None, c, st)
        commit(c, t, st)
    return max(st['slot'], st['mfma_free'])


def build_deps(prog):
    last_w = {}
    readers = {}
    for i, c in enumerate(prog):
        c.idx = i
    for i, c in enumerate(prog):
        deps = {}

        def add(j, lat):
            deps[j] = max(deps.get(j, 0), lat)
        for r in c.reads:
            if r in last_w:
                p = prog[last_w[r]]
                lat = 4
                if p.kind == 'mfma':
                    lat = 16 if (c.kind == 'mfma' and r in c.srcc and c.srcc == p.writes) else 40
                elif p.kind == 'ds':
                    lat = LDS_LAT
                elif p.kind == 'trans':
                    lat = 12
                elif p.kind == 'valu' and c.kind == 'mfma':
                    lat = 12
                add(last_w[r], lat)
        for r in c.writes:
            if r in last_w:
                p = prog[last_w[r]]
                add(last_w[r], 40 if (p.kind == 'mfma' and c.kind != 'mfma') else 4)
            for j in readers.get(r, ()):
                p = prog[j]
                add(j, 16 if (p.kind == 'mfma' and r in p.srcc and c.kind != 'mfma') else 4)
        for a in c.after:
            add(a.idx, 4)
        for r in c.reads:
            readers.setdefault(r, []).append(i)
        for r in c.writes:
            last_w[r] = i
            readers[r] = []
        deps.pop(i, None)
        c.deps = deps


def schedule(prog, history=(), ds_chain=False, verbose=False, urgent_ok=True, jitter=None):
    lastm = lastds = lastvm = lastst = None
    for c in prog:
        if c.kind == 'mfma':
            if c.floating:
                continue
            if lastm is not None:
                c.after.append(lastm)
            lastm = c
        elif c.kind == 'ds' and ds_chain:
            if lastds is not None:
                c.after.append(lastds)
            lastds = c
        elif c.kind in ('dma', 'vld'):
            if lastvm is not None:
                c.after.append(lastvm)
            lastvm = c
        elif c.kind == 'vst':
            if lastst is not None:
                c.after.append(lastst)
            lastst = c
    build_deps(prog)
    n = len(prog)
    succ = [[] for _ in range(n)]
    for c in prog:
        for j, lat in c.deps.items():
            succ[j].append((c.idx, lat))
    def dur(c):
        if c.kind == 'mfma':
            return 16
        if c.kind == 'trans' or c.op.replace('_e32', '') in SWAPS:
            return 8
        return 4
    nm = sum(1 for c in prog if c.kind == 'mfma')
    tail = [0] * n
    for c in reversed(prog):
        best = dur(c)
        for (s, lat) in succ[c.idx]:
            l = lat
            if c.kind == 'mfma' and prog[s].kind == 'mfma':
                l = max(l, 16)
            best = max(best, l + tail[s])
        tail[c.idx] = best
    horizon = max(tail) if tail else 0
    latest = [horizon - tail[i] for i in range(n)]
    if jitter is not None:
        rng, amp = jitter
        cls = {k: rng.uniform(-amp, amp) for k in ('valu', 'trans', 'ds')}
        latest = [latest[i] + cls.get(prog[i].kind, 0) + rng.uniform(-amp, amp) * 0.5 for i in range(n)]
    done_t = [None] * n
    mlist = [c for c in prog if c.kind == 'mfma' and not c.floating]
    remaining = set(range(n))
    npred = [len(c.deps) for c in prog]
    ready = [i for i in range(n) if npred[i] == 0]
    st = new_state()
    out = []
    ctx = list(history)[-24:]

    def states_ok(c):
        dist = 0
        need = 0
        seq = ctx
        k = len(seq) - 1
        while k >= 0 and dist < MAX_STATES:
            nn = need_states(seq[k], c)
            need = max(need, nn - dist)
            dist += states_of(seq[k])
            k -= 1
        return need

    def ready_time(c):
        t = c.notbefore
        for j, lat in c.deps.items():
            t = max(t, done_t[j] + lat)
        return t

    glued = {id(c.glue): c for c in prog if c.glue is not None}
    while remaining:
        cands = []
        for i in ready:
            c = prog[i]
            g = glued.get(id(c))
            if g is not None and npred[g.idx] > 1:
                continue
            t0 = issue_time(None, None, c, st)
            t = max(t0, ready_time(c))
            cands.append((i, c, t, states_ok(c)))
        if out and id(out[-1]) in glued:
            g = glued[id(out[-1])]
            cands = [(g.idx, g, issue_time(None, None, g, st), 0)]
        mf = [x for x in cands if x[1].kind == 'mfma']
        now = st['slot']
        fl = [x for x in mf if x[1].floating and x[3] == 0 and x[2] <= max(st['mfma_free'], st['vec_free'], now)]
        ch = [x for x in mf if not x[1].floating]
        if fl:
            mf = fl[:1]
        elif ch:
            mf = ch[:1]
        else:
            mf = sorted(mf, key=lambda x: (x[3], x[2]))[:1]
        pick = None
        if mf:
            i, c, tm, need = mf[0]
            if need == 0:
                best = None
                after_mfma = st['last_kind'] == 'mfma'
                for (j, d, t, nd) in cands:
                    if d.kind == 'mfma' or nd > 0:
                        continue
                    scal = d.kind in SCALAR
                    if scal and after_mfma and t <= now:
                        key = (-1, latest[j] + d.prio, t, j)
                        if best is None or key < best[0]:
                            best = (key, (j, d, t, nd))
                        continue
                    if scal and not after_mfma and (latest[j] + d.prio > now + 64 or d.kind in ('wait', 'barrier')):
                        continue
                    if t > tm - 4 and t > now + 12:
                        continue
                    if d.kind in ('dma', 'vld', 'vst') or d.op.startswith('ds_write'):
                        if st['vec_by_mfma'] and ready_time(d) <= now + 8:
                            key = (-0.5, latest[j] + d.prio, t, j)
                            if best is None or key < best[0]:
                                best = (key, (j, d, t, nd))
                            continue
                        if not now > ready_time(d) + 160:
                            continue
                    st2 = dict(st)
                    commit(d, t, st2)
                    tm2 = max(issue_time(None, None, c, st2), ready_time(c))
                    delay = tm2 - tm
                    urgent = latest[j] + d.prio < tm - 16 * URGENT and (urgent_ok or d.prio <= -40000)
                    if delay <= 0 or (urgent and delay <= 12):
                        key = (0 if delay <= 0 else 1, latest[j] + d.prio, t, j)
                        if best is None or key < best[0]:
                            best = (key, (j, d, t, nd))
                pick = best[1] if best else mf[0]
                if FILL_LOOKAHEAD and best and st['vec_by_mfma'] and pick[1].kind in ('valu', 'ds') and pick[1].op.replace('_e32', '') not in SWAPS:
                    def second_exists(first):
                        st2 = dict(st)
                        commit(first[1], first[2], st2)
                        for (j2, d2, t2, nd2) in cands:
                            if d2.kind not in ('valu', 'ds') or nd2 > 0 or j2 == first[0]:
                                continue
                            t3 = max(issue_time(None, None, d2, st2), ready_time(d2))
                            st3 = dict(st2)
                            commit(d2, t3, st3)
                            if max(issue_time(None, None, c, st3), ready_time(c)) - tm <= 0:
                                return True
                        for (sx, lat) in succ[first[0]]:
                            d2 = prog[sx]
                            if npred[sx] == 1 and d2.kind == 'valu' and lat <= 4:
                                return True
                        return False
                    if not second_exists(pick) and latest[pick[0]] + pick[1].prio > now + FILL_SLACK:
                        alts = []
                        for x in cands:
                            j, d, t, nd = x
                            if nd > 0 or j == pick[0] or d.kind not in ('trans', 'valu', 'ds'):
                                continue
                            st2 = dict(st)
                            commit(d, t, st2)
                            if max(issue_time(None, None, c, st2), ready_time(c)) - tm > 0:
                                continue
                            if d.kind == 'trans' or second_exists(x):
                                alts.append((latest[j] + d.prio, j, x))
                        if alts:
                            pick = min(alts)[2]
            else:
                others = [x for x in cands if x[1].kind != 'mfma' and x[3] == 0]
                if others:
                    pick = min(others, key=lambda x: (x[2] > now + 8, latest[x[0]] + x[1].prio, x[2], x[0]))
                else:
                    nop = Inst('s_nop %d' % (need - 1))
                    t = st['slot']
                    commit(nop, t, st)
                    out.append(nop)
                    ctx.append(nop)
                    continue
        else:
            ok = [x for x in cands if x[3] == 0]
            if ok:
                nxt = next((m for m in mlist if done_t[m.idx] is None), None)
                anc = None
                if nxt is not None:
                    seen = set()
                    stack = [nxt.idx]
                    while stack:
                        z = stack.pop()
                        for j in prog[z].deps:
                            if done_t[j] is None and j not in seen:
                                seen.add(j)
                                stack.append(j)
                    anc = [x for x in ok if x[0] in seen]
                tmin = min(x[2] for x in ok)
                if anc and min(x[2] for x in anc) <= tmin + 64:
                    tm2 = min(x[2] for x in anc)
                    near = [x for x in anc if x[2] <= tm2 + 4]
                else:
                    near = [x for x in ok if x[2] <= tmin + 4]
                pick = min(near, key=lambda x: (latest[x[0]] + x[1].prio, x[2], x[0]))
            else:
                need = min(x[3] for x in cands)
                nop = Inst('s_nop %d' % (need - 1))
                commit(nop, st['slot'], st)
                out.append(nop)
                ctx.append(nop)
                continue
        i, c, t, nd = pick
        commit(c, t, st)
        done_t[i] = t
        out.append(c)
        ctx.append(c)
        if len(ctx) > 48:
            del ctx[:24]
        remaining.discard(i)
        ready.remove(i)
        for (s, lat) in succ[i]:
            npred[s] -= 1
            if npred[s] == 0:
                ready.append(s)
    if verbose:
        print('scheduled %d instrs, %d mfma, est %d cycles (mfma bound %d)' % (n, nm, max(st['slot'], st['mfma_free']), nm * 16))
    return out


URGENT = 1
FILL_LOOKAHEAD = False
FILL_SLACK = 24


def insert_lgkm_waits(seq, pending=(), slack=None):
    q = list(pending)
    age = {id(x): -48 * (len(q) - i) // 2 - 32 for i, x in enumerate(q)}
    out = []
    st = new_state()
    for c in seq:
        if c.kind in ('label', 'directive'):
            out.append(c)
            continue
        if c.kind == 'wait':
            m = re.search(r'lgkmcnt\((\d+)\)', c.text)
            if m:
                k = int(m.group(1))
                if len(q) > k:
                    q = q[len(q) - k:] if k else []
            out.append(c)
            commit(c, issue_time(None, None, c, st), st)
            continue
        need = -1
        for pos, d in enumerate(q):
            if d.op.startswith('ds_read'):
                if (c.reads & d.writes) or (c.writes & d.writes):
                    need = pos
            else:
                dr = {r for r in d.reads if is_vreg(r)}
            if isinstance(c.tag, dict) and d in c.tag.get('lds_after', ()):
                need = pos
        t = issue_time(None, None, c, st)
        if need >= 0:
            pos = need
            while pos + 1 < len(q) and t - age[id(q[pos + 1])] >= WAIT_LAT:
                pos += 1
            nleft = len(q) - pos - 1
            if nleft > 15:
                pos += nleft - 15
                nleft = 15
            w = Inst('s_waitcnt lgkmcnt(%d)' % nleft)
            k = len(out)
            nds = 0
            while k > 0 and out[k - 1].kind in ('valu', 'trans', 'ds') and len(out) - k < 3:
                if out[k - 1].kind == 'ds':
                    nds += 1
                k -= 1
            hoist = k > 0 and k < len(out) and out[k - 1].kind == 'mfma' and nds <= nleft
            if hoist and nds:
                young = [x for x in out[k:] if x.kind == 'ds']
                hoist = all(any(x is y for y in q[pos + 1:]) for x in young)
            if hoist:
                w = Inst('s_waitcnt lgkmcnt(%d)' % (nleft - nds))
                out.insert(k, w)
            else:
                out.append(w)
            commit(w, issue_time(None, None, w, st), st)
            q = q[pos + 1:]
            t = issue_time(None, None, c, st)
        commit(c, t, st)
        out.append(c)
        if c.kind == 'ds':
            q.append(c)
            age[id(c)] = t
    return out, q


def text_of(seq):
    lines = []
    for c in seq:
        if c.kind == 'label':
            lines.append(c.text)
        else:
            lines.append('    ' + c.text)
    return '\n'.join(lines)


def verify_lgkm(seq, name=''):
    q = []
    bad = []
    for c in seq:
        if c.kind in ('label', 'directive'):
            continue
        if c.kind == 'wait':
            m = re.search(r'lgkmcnt\((\d+)\)', c.text)
            if m:
                k = int(m.group(1))
                if len(q) > k:
                    q = q[len(q) - k:] if k else []
            continue
        for d in q:
            if d.op.startswith('ds_read') and ((c.reads & d.writes) or (c.writes & d.writes)):
                bad.append((name, d.text, c.text))
        if c.kind == 'ds' or c.kind == 'smem':
            q.append(c)
    return bad


def schedule_dense(prog, history=(), verbose=False, jitter=None):
    lastm = lastvm = lastst = None
    for c in prog:
        if c.kind == 'mfma' and not c.floating:
            if lastm is not None:
                c.after.append(lastm)
            lastm = c
        elif c.kind in ('dma', 'vld'):
            if lastvm is not None:
                c.after.append(lastvm)
            lastvm = c
        elif c.kind == 'vst':
            if lastst is not None:
                c.after.append(lastst)
            lastst = c
    build_deps(prog)
    n = len(prog)
    succ = [[] for _ in range(n)]
    for c in prog:
        for j, lat in c.deps.items():
            succ[j].append((c.idx, lat))
    tail = [0] * n
    cnt = [len(c.deps) for c in prog]
    topo = [i for i in range(n) if cnt[i] == 0]
    for i in topo:
        for (s, lat) in succ[i]:
            cnt[s] -= 1
            if cnt[s] == 0:
                topo.append(s)
    if len(topo) != n:
        i = next(i for i in range(n) if cnt[i])
        seen = []
        while i not in seen:
            seen.append(i)
            i = next(j for j in prog[i].deps if cnt[j])
        raise AssertionError('cycle among the ordering edges:\n' + '\n'.join(prog[j].text for j in seen[seen.index(i):]))
    for c in (prog[i] for i in reversed(topo)):
        best = 16 if c.kind == 'mfma' else 8 if c.kind == 'trans' else 4
        for (s, lat) in succ[c.idx]:
            l = max(lat, 16) if c.kind == 'mfma' and prog[s].kind == 'mfma' else lat
            best = max(best, l + tail[s])
        tail[c.idx] = best
    horizon = max(tail) if tail else 0
    key = [horizon - tail[i] + prog[i].prio for i in range(n)]
    if jitter is not None:
        rng, amp = jitter
        key = [k + rng.uniform(-amp, amp) for k in key]
    done_t = [None] * n
    npred = [len(c.deps) for c in prog]
    ready = [i for i in range(n) if npred[i] == 0]
    st = new_state()
    out = []
    ctx = list(history)[-24:]

    def states_ok(c):
        dist = need = 0
        k = len(ctx) - 1
        while k >= 0 and dist < MAX_STATES:
            need = max(need, need_states(ctx[k], c) - dist)
            dist += states_of(ctx[k])
            k -= 1
        return need
    left = n
    since = {}
    while left:
        cands = []
        for i in ready:
            c = prog[i]
            t = c.notbefore
            for j, lat in c.deps.items():
                t = max(t, done_t[j] + lat)
            cands.append((i, c, max(t, issue_time(None, None, c, st))))
        now = st['slot']
        port = max(now, st['vec_free'])
        pick = None
        sc = [x for x in cands if x[1].kind in SCALAR and x[2] <= now]
        vec = sorted((x for x in cands if x[1].kind not in SCALAR), key=lambda x: x[2])
        if sc and now + 4 <= port:
            ok = [x for x in sorted(sc, key=lambda x: key[x[0]]) if states_ok(x[1]) == 0]
            if ok:
                pick = ok[0]
        if pick is None:
            ok = [x for x in sc if x[1].prio <= -100000 and states_ok(x[1]) == 0]
            if ok:
                pick = min(ok, key=lambda x: key[x[0]])
        if pick is None and st['last_kind'] not in ('mfma',):
            tm = min([x[2] for x in vec if x[1].kind == 'mfma'] + [1 << 30])
            mem = [x for x in vec if x[1].kind in MEM and port < x[2] <= port + 8 and states_ok(x[1]) == 0]
            for x in mem:
                since.setdefault(x[0], port)
            mem = [x for x in mem if (tm > port + DENSE_M and port - since[x[0]] >= DENSE_W0) or port - since[x[0]] >= DENSE_W]
            if mem:
                pick = min(mem, key=lambda x: key[x[0]])
        if pick is None:
            ok = []
            for x in vec:
                if ok and x[2] > ok[0][2]:
                    break
                if states_ok(x[1]) == 0:
                    ok.append(x)
            late = [x for x in cands if x[1].kind in SCALAR and states_ok(x[1]) == 0]
            if ok and late:
                m = min(late, key=lambda x: (max(x[2], now), key[x[0]]))
                if max(m[2], now) + 4 <= ok[0][2]:
                    pick = m
            if pick is None and ok:
                def rank(x):
                    c = x[1]
                    if c.kind == 'mfma':
                        return (0, 0 if c.floating else 1, key[x[0]])
                    if c.kind in MEM:
                        return (1, 0, key[x[0]])
                    if c.op.startswith('v_pk_'):
                        return (2, 0, key[x[0]])
                    return (3, 0, key[x[0]])
                pick = min(ok, key=rank)
            elif pick is None and late:
                pick = min(late, key=lambda x: (x[2], key[x[0]]))
        if pick is None:
            need = min(states_ok(x[1]) for x in cands)
            nop = Inst('s_nop %d' % (need - 1))
            commit(nop, now, st)
            out.append(nop)
            ctx.append(nop)
            continue
        i, c, t = pick
        commit(c, t, st)
        done_t[i] = t
        out.append(c)
        ctx.append(c)
        if len(ctx) > 48:
            del ctx[:24]
        left -= 1
        ready.remove(i)
        for (s, lat) in succ[i]:
            npred[s] -= 1
            if npred[s] == 0:
                ready.append(s)
    if verbose:
        nm = sum(1 for c in prog if c.kind == 'mfma')
        print('dense %d instrs, %d mfma, est %d cycles, port %d' % (n, nm, max(st['slot'], st['mfma_free']), port_time(prog)))
    return out


DENSE_M = 24
DENSE_W0 = 24
DENSE_W = 80


def port_time(seq):
    t = 0
    for c in seq:
        if c.kind == 'mfma' or c.kind == 'trans' or c.op.replace('_e32', '') in SWAPS:
            t += 8
        elif c.kind == 'valu':
            t += 4
        elif c.kind == 'ds':
            t += 4 if c.op.startswith('ds_read') else 12 if c.op == 'ds_write_b64' else 20
        elif c.kind in MEM:
            t += 12
    return t


def merge_waits(seq):
    out = []
    for c in seq:
        if c.kind == 'barrier' and out and out[-1].kind == 'wait' and re.fullmatch(r's_waitcnt lgkmcnt\(\d+\)', out[-1].text):
            n = int(re.search(r'\((\d+)\)', out[-1].text).group(1))
            k = len(out) - 2
            while k >= 0 and k >= len(out) - 8 and not (out[k].kind == 'wait' and isinstance(out[k].tag, dict)):
                if out[k].kind == 'ds':
                    n -= 1
                k -= 1
            if k >= 0 and n >= 0 and out[k].kind == 'wait' and isinstance(out[k].tag, dict):
                out[k].tag['lgkm'] = n
                out[k].text += ' lgkmcnt(%d)' % n
                out.pop()
        out.append(c)
    return out


FLEX = ('v_exp_f32', 'v_rcp_f32', 'v_mov_b32', 'v_max_f32', 'v_mul_f32', 'v_add_u32', 'v_sub_u32', 'v_subrev_u32', 'v_xor_b32',
        'v_and_b32', 'v_lshlrev_b32', 'v_lshrrev_b32', 'v_add_f32', 'v_permlane16_swap_b32', 'v_permlane32_swap_b32',
        'v_cmp_ngt_f32', 'v_mul_u32_u24')
_SIZE = {}


def sizes(seq):
    import subprocess
    import tempfile
    todo = sorted({c.text for c in seq if c.kind not in ('label', 'directive', 'branch') and c.text not in _SIZE})
    if todo:
        with tempfile.NamedTemporaryFile('w', suffix='.s') as f:
            f.write('\n'.join(todo) + '\n')
            f.flush()
            r = subprocess.run(['llvm-mc', '-triple=amdgcn-amd-amdhsa', '-mcpu=gfx950', '-show-encoding', f.name],
                               capture_output=True, text=True)
        enc = re.findall(r'encoding: \[([^\]]*)\]', r.stdout)
        assert len(enc) == len(todo), r.stderr[:2000]
        for t, e in zip(todo, enc):
            _SIZE[t] = len(e.split(','))
    return [0 if c.kind in ('label', 'directive') else 4 if c.kind == 'branch' else _SIZE[c.text] for c in seq]


def align8(seq, verbose=''):
    sz = sizes(seq)
    INF = 1e9
    cost = [0.0, INF]
    back = []
    before = 0
    par = 0
    for i, c in enumerate(seq):
        before += par if sz[i] == 8 else 0
        par = 0 if c.kind == 'directive' else (par + sz[i] // 4) & 1
        nxt = [INF, INF]
        how = [None, None]

        def opt_(p0, p1, extra, act):
            if cost[p0] + extra < nxt[p1]:
                nxt[p1] = cost[p0] + extra
                how[p1] = (p0, act)
        prev = seq[i - 1] if i else None
        free = prev is not None and prev.kind == 'mfma' and c.kind in ('valu', 'trans', 'ds', 'mfma')
        for p in (0, 1):
            if cost[p] >= INF:
                continue
            for pad, pc in ((0, 0.0), (1, 0.05 if free else 4.0)):
                if pad and c.kind in ('label', 'directive'):
                    continue
                q = p ^ pad
                if c.kind == 'directive':
                    opt_(p, 0, 0, (0, None))
                elif sz[i] == 4 and c.op in FLEX:
                    opt_(p, q ^ 1, pc, (pad, None))
                    opt_(p, q, pc + q + 0.001, (pad, 'e64'))
                elif sz[i] == 8:
                    opt_(p, q, pc + q, (pad, None))
                else:
                    opt_(p, q ^ (sz[i] // 4 & 1), pc, (pad, None))
        back.append(how)
        cost = nxt
    p = 0 if cost[0] <= cost[1] else 1
    total = cost[p]
    acts = []
    for how in reversed(back):
        p, act = how[p]
        acts.append(act)
    out = []
    npad = 0
    for c, (pad, enc) in zip(seq, reversed(acts)):
        if pad:
            out.append(Inst('s_nop 0'))
            npad += 1
        if enc:
            c.text = c.text.replace(c.op, c.op + '_e64', 1)
        out.append(c)
    if verbose:
        import sys
        print('align %s: %d misplaced before, cost %.0f after, %d pads' % (verbose, before, total, npad), file=sys.stderr)
    return out
```

```python
import argparse
import re
import sys

import asmlib
from asmlib import (Inst, schedule, schedule_dense, insert_lgkm_waits, fix_hazards, check_hazards, verify_lgkm, estimate, text_of,
                    merge_waits, align8)

NAME = 'standalone__gqa_softmax__near_ridge_kernel'
SQ, SK, D = 848, 512, 192
QHEAD = SQ * D * 2
KHEAD = SK * D * 2
TILE = 32 * D * 2
VBASE = 3 * TILE
QOBASE = 6 * TILE
QOW = 22528
STG = 18432
LDS_BYTES = QOBASE + 4 * QOW
QBYTES = 512 * QHEAD
KBYTES = 512 * KHEAD
NPASS = 6
assert LDS_BYTES == 163840

sW = 3
SRD_K, SRD_V, SRD_Q, SRD_O = 4, 8, 12, 16
sOffK, sOffV = 20, 21
sW3, sW3V, sQOw = 22, 23, 24
sNx0, sNx1 = 25, 26
sOp, sQp, sQOd = 27, 28, 29
sKV = 30
sFlag, sBit = 31, 32
sHead0 = 33
sJ = 34
sC, sThr, sTrip, sT5 = 36, 37, 38, 40
sQn, sOc = 41, 42
sPC, sCode = 46, 48
sT0, sT1, sT2, sT3 = 62, 63, 64, 65
sPn = 69
sOu = [84, 85, 86, 87, 66]

vKA = [0, 1]
vVA = [2, 3, 4, 5]
vD = [6, 7, 8]
vOG, vPR = 9, 10
vQA = [11, 12]
vNM = [13, 14, 15, 16, 17]
vIDX = 18
vX = 19
PREG = 20
TS = 60
SREG = 72
O2 = 112
TMP = SREG + 8
OV = 160
QA0 = 0
FR = 120
aSEL = 152
aRB = 156
OA = 160


def S(u, kt):
    return SREG + (u * 2 + kt) * 4


def Pop(u, b):
    return PREG + 16 + 4 * b if u == 4 else PREG + 24 * b + 4 * u


def Pdst(u, kt, h, b):
    return Pop(u, b) + 2 * kt + h


def Lw(u):
    return TS + 2 * u


def Qr(u, ks):
    i = u * 6 + ks
    return 'a[%d:%d]' % (QA0 + 4 * i, QA0 + 4 * i + 3)


def O(u, t):
    if u < 2:
        return 'v', OV + (u * 12 + t) * 4
    if u == 2:
        return 'v', O2 + 4 * t
    return 'a', OA + ((u - 3) * 12 + t) * 4


def Oq(u, t):
    f, i = O(u, t)
    return '%s[%d:%d]' % (f, i, i + 3)


def vr(x, n=4):
    return 'v[%d:%d]' % (x, x + n - 1)


def ar(x, n=4):
    return 'a[%d:%d]' % (x, x + n - 1)


class Opt:
    pol_kv = ''
    pol_q = 'nt'
    pol_o = 'nt'
    thr = 0x21800000
    stamps = False
    prof = False
    verbose = False
    vlead = 4
    mpos5 = 41
    mpos4 = 33
    wshift = 0
    wbit = 1
    hoist5 = 5
    hoist4 = 3
    ipre = 32
    ldsw = 40
    ldsw2 = 72
    stw = 52
    dmad = 12
    bar = 16
    stgap = 60
    lds_lat = 120
    wait_lat = 120
    lds_occ = 4
    lds_occ_tr = 4
    lds_q = 0
    tries = 6
    dma_t1 = 0.95
    qo_t0 = 0.06
    qo_t1 = 0.3
    epi_prio = -45000
    q2wait_t = 900
    q3wait_t = 1800
    q4wait_t = 2300
    yb_t = 1500
    qd_t0 = 200
    qd_gap = 130
    grp = 4
    lead = 2
    bc_extra = 0
    b_len5 = 3400
    b_len4 = 2700
    noq = False
    nost = False
    nobar = False
    kvfix = False
    drop = ''
    short = True
    fine = ''
    fine_bar = False
    fine_vm = False
    fine_lo = 0
    fine_hi = 100000
    pair_st = False
    c_lead = 4
    dm = 24
    dw0 = 0
    dw = 80
    mix = True
    align = False
    onerole = -1
    perm = False
    around = ''
    dmaw = 0
    dmav = 0
    qk = 'S'
    pv = 'b2'
    endp = '60,52,40,72'
    endm = False
    endo = ''
    order0 = 'kqKQ'
    rev = 0
    lds_lat_tr = 120
    v2c = True
    tries_tr = 16
    sweeps = 1
    ilate = True
    irefresh = 5
    start2 = True
    groups5 = '0,1,2,3,4'
    groups4 = '0,1,2,3'
    order2 = 'kqKLvQ'
    end2 = False
    endg5 = '01,234'
    endg4 = '01,23'
    end_tail = 6
    dclus = 0
    burn = 0
    pad = 0
    force = False


opt = Opt()


def I(text, **kw):
    return Inst(text, **kw)


def chain_seq(seq, chain):
    for x in seq:
        if chain[0] is not None:
            x.after.append(chain[0])
        chain[0] = x


def pol(p):
    return (' ' + p) if p else ''


def fr(n):
    return FR + 4 * (n % 8)


def k_read(n, kt, ks, slot, key):
    r = fr(n)
    return r, I('ds_read_b128 %s, v%d offset:%d' % (ar(r), vKA[ks % 2], slot * TILE + kt * 6144 + (ks // 2) * 128), tag=key)


def qk_stream(groups, slot, base=4):
    out, mf, reads = [], [], []
    n = base
    for grp in groups:
        grp = list(grp)
        for kt in range(2):
            reg = {}
            if opt.qk == 'A':
                seq = [(ks, u) for ks in range(6) for u in grp]
            else:
                seq = []
                for i, u in enumerate(grp):
                    up = opt.qk == 'C' or (len(grp) - 1 - i if kt == 0 else i) % 2 == 0
                    seq += [(ks, u) for ks in (range(6) if up else range(5, -1, -1))]
            seen = set()
            for ks, u in seq:
                if ks not in reg:
                    reg[ks], rd = k_read(n + ks, kt, ks, slot, ('kf', kt, ks, grp[0]))
                    out.append(rd)
                    reads.append(rd)
                d = vr(S(u, kt))
                m = I('v_mfma_f32_16x16x32_bf16 %s, %s, %s, %s' % (d, ar(reg[ks]), Qr(u, ks), d if u in seen else '0'), tag=('qk', kt, ks, u))
                seen.add(u)
                out.append(m)
                mf.append(m)
            n += 6
    return out, mf, reads


def v_reads(slot, b, lo, hi, base=0):
    out = []
    for t in range(lo, hi):
        r = fr(base + t)
        off = (t // 4) * 128 + slot * TILE
        x, y = off, off + 6144
        out += [I('ds_read_b64_tr_b16 %s, v%d offset:%d' % (ar(r, 2), vVA[t % 4], x), tag=('vf', t)),
                I('ds_read_b64_tr_b16 %s, v%d offset:%d' % (ar(r + 2, 2), vVA[t % 4], y), tag=('vf', t))]
    return out


def pv_stream(T, b, slot, first, base=0):
    out, mf, reads = [], [], []
    if opt.pv == 'tu':
        seq = [(t, u) for t in range(12) for u in range(T)]
    elif opt.pv == 'sn':
        seq = [(t, u) for t in range(12) for u in (range(T) if t % 2 == 0 else range(T - 1, -1, -1))]
    else:
        seq = []
        for k in range(6):
            for i, u in enumerate(range(T) if k % 2 == 0 else range(T - 1, -1, -1)):
                seq += [(2 * k, u), (2 * k + 1, u)] if i % 2 == 0 else [(2 * k + 1, u), (2 * k, u)]
    seen = set(range(opt.vlead))
    for t, u in seq:
        if t not in seen:
            seen.add(t)
            rd = v_reads(slot, b, t, t + 1, base)
            out += rd
            reads += rd
        d = Oq(u, t)
        m = I('v_mfma_f32_16x16x32_bf16 %s, %s, %s, %s' % (d, ar(fr(base + t)), vr(Pop(u, b)), '0' if first else d), tag=('pv', t, u))
        out.append(m)
        mf.append(m)
    return out, mf, reads


def q_reads(u, place):
    return [I('ds_read_b128 %s, v%d offset:%d' % (Qr(u, ks), vQA[ks % 2], place * 6144 + (ks // 2) * 128), tag=('qf', u, ks))
            for ks in range(6)]


def hoist(T):
    return opt.hoist5 if T == 5 else opt.hoist4


def sm_pairs(T):
    return [(u, 0, h) for u in range(T) for h in range(2)] + [(u, 1, h) for u in range(T) for h in range(2)]


def sm_exp(u, kt, h):
    a = S(u, kt) + 2 * h
    return [I('v_fma_f32 v%d, v%d, s%d, v%d' % (a, a, sC, vNM[u])),
            I('v_fma_f32 v%d, v%d, s%d, v%d' % (a + 1, a + 1, sC, vNM[u])),
            I('v_exp_f32 v%d, v%d' % (a, a)),
            I('v_exp_f32 v%d, v%d' % (a + 1, a + 1))]


def sm_cvt(u, kt, h, b):
    a = S(u, kt) + 2 * h
    return I('v_cvt_pk_bf16_f32 v%d, v%d, v%d' % (Pdst(u, kt, h, b), a, a + 1))


def sm_head(T, b):
    out = []
    for (u, kt, h) in sm_pairs(T)[:hoist(T)]:
        out += sm_exp(u, kt, h) + [sm_cvt(u, kt, h, b)]
    return out


def sm_body(T, b, lo):
    pre, post = [], []
    for (u, kt, h) in sm_pairs(T)[lo:]:
        pre += sm_exp(u, kt, h)
        pre.append(sm_cvt(u, kt, h, b))
    return pre, post


def sums(T, b, first=False):
    out = []
    for q, u in enumerate((0, 2, 4)[:T - 2]):
        if first:
            out += [I('v_mov_b32 v%d, 0' % (TS + 4 * q + i)) for i in range(4)]
        if u == 4 and b == 0:
            continue
        m = I('v_smfmac_f32_16x16x64_bf16 %s, %s, %s, v%d' % (vr(TS + 4 * q), ar(aSEL), vr(Pop(u, b if u < 4 else 0), 8), vIDX),
              tag=('ts', u))
        m.floating = True
        out.append(m)
    return out


def max_init(T):
    out = []
    for u in range(T):
        s = [S(u, kt) + i for kt in range(2) for i in range(4)]
        r = Pop(u, 1)
        x = r + 1
        out += [I('v_max3_f32 v%d, v%d, v%d, v%d' % (r, s[0], s[1], s[2])),
                I('v_max3_f32 v%d, v%d, v%d, v%d' % (r, r, s[3], s[4])),
                I('v_max3_f32 v%d, v%d, v%d, v%d' % (r, r, s[5], s[6])),
                I('v_max_f32 v%d, v%d, v%d' % (r, r, s[7])),
                I('v_mov_b32 v%d, v%d' % (x, r)),
                I('v_permlane32_swap_b32 v%d, v%d' % (x, r)),
                I('v_max_f32 v%d, v%d, v%d' % (r, r, x)),
                I('v_mov_b32 v%d, v%d' % (x, r)),
                I('v_permlane16_swap_b32 v%d, v%d' % (x, r)),
                I('v_max_f32 v%d, v%d, v%d' % (r, r, x)),
                I('v_mul_f32_e64 v%d, -s%d, v%d' % (vNM[u], sC, r))]
    return out


def dma_tile(kind, n, slot, chain, t0, t1, after=(), src=None, switch=False):
    srd, off, w3 = (SRD_K, sOffK, sW3) if kind == 'k' else (SRD_V, sOffV, sW3V)
    dm = []
    out = []
    if switch:
        out += [I('s_cmp_eq_u32 s%d, 1' % sTrip), I('s_cselect_b32 s%d, s%d, s%d' % (off, sNx1, off))]
    out.append(I('s_add_u32 m0, s%d, %d' % (w3, slot * TILE)))
    for c in range(3):
        d = I('buffer_load_dwordx4 v%d, s[%d:%d], s%d offen offset:%d%s lds' %
              (vD[c], srd, srd + 3, off if src is None else src, c * 1024, pol(opt.pol_kv)), vm_id=(kind, n))
        d.notbefore = int(t0 + (t1 - t0) * c / 3)
        d.prio = -100000
        d.after += list(after)
        out.append(d)
        dm.append(d)
    if src is None and not opt.kvfix:
        out.append(I('s_add_u32 s%d, s%d, %d' % (off, off, TILE)))
    chain_seq(out, chain)
    return out, dm


def q_group(sl, imm, tag):
    return ([I('s_add_u32 m0, s%d, %d' % (sl, imm))] +
            [I('buffer_load_dwordx4 v%d, s[%d:%d], s%d offen offset:%d%s lds' % (vD[c], SRD_Q, SRD_Q + 3, sQp, c * 1024, pol(opt.pol_q)),
               vm_id=tag) for c in range(3)] +
            [I('s_add_u32 s%d, s%d, 3072' % (sQp, sQp))])


def park_out(i, chain, t0, t1):
    out = []
    for c in range(3):
        rb = aRB
        t = int(t0 + (t1 - t0) * c / 3)
        r = I('ds_read_b128 %s, v%d offset:%d' % (ar(rb), vPR, i * 3072 + c * 1024))
        r.notbefore = max(0, t - 260)
        r.prio = -30000
        st = I('buffer_store_dwordx4 %s, v%d, s[%d:%d], s%d offen offset:%d%s' % (ar(rb), vOG, SRD_O, SRD_O + 3, sOp, c * 128, pol(opt.pol_o)),
               vm_id=('st',))
        st.notbefore = t + 160
        st.prio = -100000
        seq = [st] + ([I('s_add_u32 s%d, s%d, 3072' % (sOp, sOp))] if c == 2 else [])
        chain_seq(seq, chain)
        out += [r] + seq
    return out


def park_in(i, chain, t0, t1, tag='qg'):
    u = q_group(sQOd, 0, (tag, i)) + [I('s_add_u32 s%d, s%d, 3072' % (sQOd, sQOd))]
    for c in range(3):
        u[1 + c].notbefore = int(t0 + (t1 - t0) * c / 3)
        u[1 + c].prio = -100000
    chain_seq(u, chain)
    return u


def vm_wait(need):
    w = I('s_waitcnt vmcnt(0)')
    w.tag = {'need': need}
    return w


def barrier(need, after, notbefore, done=()):
    w = vm_wait(need)
    w.after += list(after)
    w.notbefore = notbefore
    w.prio = -100000
    b = I('s_barrier' if not opt.nobar else 's_nop 0')
    b.kind = 'barrier'
    b.after.append(w)
    b.prio = -100000
    if done:
        b.reads = set().union(*[r.writes for r in done])
        b.after += list(done)
        w.after += list(done)
    return w, b


def early_v(slot, b, H, T, bar=None, base=0):
    out = v_reads(slot, b, 0, opt.vlead, base)
    for r in out:
        t = r.tag[1]
        if bar is not None:
            r.after.append(bar)
        r.prio = -(H + 400) + 16 * T * t
        r.notbefore = H - 16 * 12 + 16 * T * t // 2
    return out


def item_calc(pn):
    o = []
    A = lambda t: o.append(I(t))
    A('s_lshl_b32 s%d, s%d, 5' % (sT0, pn))
    A('s_add_u32 s%d, s%d, s%d' % (sT0, sT0, sJ))
    A('s_mul_i32 s%d, s%d, 171' % (sT1, sT0))
    A('s_lshr_b32 s%d, s%d, 9' % (sT1, sT1))
    A('s_mul_i32 s%d, s%d, 3' % (sT2, sT1))
    A('s_sub_u32 s%d, s%d, s%d' % (sT0, sT0, sT2))
    if opt.rev:
        A('s_lshl_b32 s%d, s%d, 1' % (sT0, sT0))
        A('s_cmp_eq_u32 s%d, 4' % sT0)
        A('s_cselect_b32 s%d, 1, s%d' % (sT0, sT0))
    if opt.onerole >= 0:
        A('s_mov_b32 s%d, %d' % (sT0, opt.onerole))
    if opt.perm:
        A('s_mul_i32 s%d, s%d, 187' % (sT2, sT1))
        A('s_lshr_b32 s%d, s%d, 11' % (sT2, sT2))
        A('s_mul_i32 s%d, s%d, 65' % (sT3, sT2))
        A('s_mul_i32 s%d, s%d, 6' % (sT1, sT1))
        A('s_sub_u32 s%d, s%d, s%d' % (sT1, sT1, sT3))
        A('s_cmp_gt_u32 s%d, 59' % sT1)
        A('s_subb_u32 s%d, s%d, 0' % (sT1, sT1))
    A('s_add_u32 s%d, s%d, s%d' % (sT1, sT1, sHead0))
    A('s_mul_i32 s%d, s%d, %d' % (sKV, sT1, KHEAD))
    A('s_mul_i32 s%d, s%d, %d' % (sQn, sT1, QHEAD))
    A('s_lshl_b32 s%d, s%d, 2' % (sT1, sW))
    A('s_add_u32 s%d, s%d, 21' % (sT2, sT1))
    A('s_cmp_eq_u32 s%d, 0' % sW)
    A('s_cselect_b32 s%d, 20, s%d' % (sT2, sT2))
    A('s_cselect_b32 s%d, 1, 0' % sT5)
    A('s_add_u32 s%d, s%d, 37' % (sT3, sT1))
    A('s_cmp_eq_u32 s%d, 2' % sT0)
    A('s_cselect_b32 s%d, s%d, s%d' % (sT2, sT3, sT2))
    A('s_cselect_b32 s%d, 0, s%d' % (sT5, sT5))
    A('s_add_u32 s%d, s%d, s%d' % (sT3, sT1, sW))
    A('s_cmp_eq_u32 s%d, 0' % sT0)
    A('s_cselect_b32 s%d, s%d, s%d' % (sT2, sT3, sT2))
    A('s_cselect_b32 s%d, 1, s%d' % (sT5, sT5))
    A('s_mul_i32 s%d, s%d, 6144' % (sT2, sT2))
    A('s_add_u32 s%d, s%d, s%d' % (sQn, sQn, sT2))
    return o


def new_pass(first):
    o = [I('s_mov_b32 s%d, %s' % (sOp, QBYTES if first else 's%d' % sOc)),
         I('s_mov_b32 s%d, s%d' % (sOc, sQn)),
         I('s_add_u32 s%d, s%d, 1' % (sPn, sPn))]
    o += item_calc(sPn)
    o += [I('s_cmp_ge_u32 s%d, %d' % (sPn, NPASS)),
          I('s_cselect_b32 s%d, %d, s%d' % (sQn, QBYTES, sQn)),
          I('s_cselect_b32 s%d, %d, s%d' % (sKV, KBYTES, sKV)),
          I('s_add_u32 s%d, s%d, s%d' % (sNx0, sKV, sW3)),
          I('s_add_u32 s%d, s%d, %d' % (sNx1, sNx0, TILE)),
          I('s_mov_b32 s%d, s%d' % (sQp, sQn)),
          I('s_mov_b32 s%d, s%d' % (sQOd, sQOw))]
    return o


def phase_iter(T, j, n0=0, qo=None, tail=(), vtail=(), shift=0, loop=False):
    b = j & 1
    nb = 1 - b
    chain = [None]
    prog = []
    H = 16 * 25 * T
    pre_vm = []
    if qo and not (j & 1 and opt.pair_st):
        d = (park_out if j & 1 else park_in)(qo[0], chain, H * opt.qo_t0, H * opt.qo_t1)
        pre_vm = [x for x in d if x.kind in ('dma', 'vst')]
        prog += d
    if loop and j == opt.irefresh:
        d = code_refresh(int(H * 0.15))
        pre_vm = pre_vm + d[-1:]
        prog += d
    pre, post = sm_body(T, b, hoist(T))
    prog += pre
    pv, pvm, vre = pv_stream(T, nb, (j - 1) % 3, j == 1)
    prog += pv
    tm = 16 * ((opt.mpos5 if T == 5 else opt.mpos4) - shift)
    w, bar = barrier([('k', n0 + j + 1), ('v', n0 + j)], pre_vm, tm - 16, done=vre)
    prog += [w, bar]
    prog += post
    prog += sums(T, b)
    qk, qkm, kre = qk_stream([range(T)], (j + 1) % 3)
    for r in kre[:8]:
        r.after.append(bar)
        r.prio = -30000
    prog += qk
    t0 = tm + 100
    t1 = H * opt.dma_t1
    d, dm = dma_tile('v', n0 + j + 2, (j + 2) % 3, chain, t0, (t0 + t1) / 2, after=[bar], switch=loop and j == 8)
    d2, dm2 = dma_tile('k', n0 + j + 3, j % 3, chain, (t0 + t1) / 2, t1, after=[bar], switch=loop and j == 7)
    if opt.dclus:
        for g in (dm, dm2):
            for c, x in enumerate(g):
                x.notbefore = g[0].notbefore + opt.dclus * c
        for c, x in enumerate([x for x in pre_vm if x.kind == 'dma']):
            x.notbefore = pre_vm[0].notbefore + opt.dclus * c
    if qo and j & 1 and opt.pair_st:
        po = park_out(qo[0], [None], 0, 0)
        for x, y in zip([x for x in po if x.kind == 'vst'], (dm + dm2)[1::2]):
            x.notbefore = y.notbefore
            x.after.append(bar)
            y.after.append(x)
            y.glue = x
        for x, y in zip([x for x in po if x.kind == 'ds'], (dm + dm2)[1::2]):
            x.notbefore = y.notbefore - 260
        prog += [x for x in po if x.kind != 'salu']
        d2 = d2 + [x for x in po if x.kind == 'salu']
        chain_seq(d2[-1:], chain)
    prog += d + d2
    prog += sm_head(T, nb)
    for k in range(opt.burn if loop and j != opt.irefresh else 0):
        prog.append(I('v_fma_f32 v%d, v%d, v%d, v%d' % (vX, OV + 5 * k % 96, O2 + 7 * k % 48, OV + 11 * k % 96)))
        prog[-1].reads = set()
        prog[-1].prio = 100000
    prog += list(vtail)
    if tail:
        tail = list(tail)
        for x in tail:
            x.prio = -90000
        chain_seq(tail, chain)
        prog += tail
    prog += early_v(j % 3, b, H, T)
    return prog


def flag_ops(T):
    t = [Lw(u) for u in range(T)]
    out = [I('v_add_f32 v%d, v%d, v%d' % (x, x, x + 1)) for x in t]
    if T == 5:
        out += [I('v_add_f32 v%d, v%d, v%d' % (t[4], t[4], t[4] + i)) for i in (2, 3)]
    out += [I('v_rcp_f32 v%d, v%d' % (x, x)) for x in t]
    x = TS + 1
    out.append(I('v_min3_f32 v%d, v%d, v%d, v%d' % (x, t[0], t[1], t[2])))
    if T == 5:
        out.append(I('v_min3_f32 v%d, v%d, v%d, v%d' % (x, x, t[3], t[4])))
    else:
        out.append(I('v_min_f32 v%d, v%d, v%d' % (x, x, t[3])))
    out += [I('v_cmp_nlt_f32 vcc, s%d, v%d' % (sThr, x)),
            I('s_cmp_lg_u64 vcc, 0'),
            I('s_cselect_b32 s%d, s%d, 0' % (sT0, sBit)),
            I('s_or_b32 s%d, s%d, s%d' % (sFlag, sFlag, sT0)),
            I('s_lshl_b32 s%d, s%d, 1' % (sBit, sBit))]
    return out


def q_late(u, place, chain, t0, guard=()):
    out, vm = [], []
    for rg in range(2):
        g = q_group(sQOw, place * 6144 + rg * 3072, ('ql', u))
        for c in range(3):
            x = g[1 + c]
            if guard:
                x.reads = x.reads | set().union(*[r.writes for r in guard])
            x.notbefore = t0 + opt.qd_gap * (3 * rg + c)
            x.prio = -100000
            vm.append(x)
        chain_seq(g, chain)
        out += g
    return out, vm


def phase_A(T, Tn, last):
    chain = [None]
    prog = [I('v_subrev_u32 v%d, %d, v%d' % (vPR, STG, vPR))]
    H = 16 * 13 * T + 4 * 20 * T
    vm = []
    if not last:
        w = vm_wait([('qg', 3)])
        w.prio = -100000
        prog.append(w)
        q0 = q_reads(0, 0)
        q1 = q_reads(1, 1)
        for r in q0 + q1:
            r.after.append(w)
        for r in q0:
            r.prio = -50000
        prog += q0 + q1
        d, vm = q_late(3, 0, chain, opt.qd_t0, q0)
        prog += d
    pre, post = sm_body(T, 1, hoist(T))
    prog += pre
    pv, pvm, vre = pv_stream(T, 0, 2, False)
    prog += pv
    w, bar = barrier([('v', 15)], vm, 16 * 10 * T, done=vre)
    prog += [w, bar]
    prog += post
    prog += sums(T, 1)
    if not last:
        d, dm = dma_tile('k', 16, 0, chain, 0, 0, after=[bar], src=sNx0)
        prog += d
    prog += early_v(0, 1, 16 * 13 * T + 200, T, bar, 4)
    return prog


def epi_order(T, Tn):
    if T == 5:
        o = [((c, 3), (c, 4)) for c in range(3)]
    else:
        o = [((0, 3), (1, 3)), ((2, 3),)]
    seq = [(c, u) for u in ((2, 0, 1) if Tn == 5 else (1, 2, 0)) for c in range(3)]
    pk = [tuple(seq[i:i + 2]) for i in range(0, 9, 2)]
    if Tn == 0 and opt.endo:
        pk = [((0, 0), (0, 1)), ((0, 2), (1, 2)), ((1, 0), (1, 1)), ((2, 0), (2, 1)), ((2, 2),)]
        pat = {5: 'PDPPDDPP', 4: 'PPDPPDP'}[T] if opt.endo == 'a' else {5: 'DPDPPDPP', 4: 'PDPPDPP'}[T]
        return [(o if x == 'D' else pk).pop(0) for x in pat]
    if not opt.mix:
        return o + pk
    pat = {(5, 5): 'DDPDPPPP', (5, 4): 'DPDPDPPP', (4, 5): 'DPDPPPP', (4, 4): 'PDPDPPP', (5, 0): 'PDPDPDPP', (4, 0): 'PDPDPPP'}[T, Tn]
    return [(o if x == 'D' else pk).pop(0) for x in pat]


def epilogue(T, Tn, last, gate, pool, order=None):
    out = []
    A = lambda t: out.append(I(t))
    inv = [Lw(u) for u in range(T)]
    wa = [(Pop(4, 0) if order is None else S(0, 0)) + i for i in range(4)]
    dl, ln, t1 = vX, wa[3], wa[2]
    k0 = len(out)
    A('v_mbcnt_lo_u32_b32 v%d, -1, 0' % ln)
    A('v_mbcnt_hi_u32_b32 v%d, -1, v%d' % (ln, ln))
    A('v_and_b32 v%d, 7, v%d' % (t1, ln))
    A('v_lshrrev_b32 v%d, 5, v%d' % (dl, ln))
    A('v_xor_b32 v%d, v%d, v%d' % (t1, t1, dl))
    A('v_and_b32 v%d, 15, v%d' % (dl, ln))
    A('v_lshl_add_u32 v%d, v%d, 7, s%d' % (dl, dl, sQOw))
    A('v_lshl_add_u32 v%d, v%d, 4, v%d' % (dl, t1, dl))
    A('v_bfe_u32 v%d, v%d, 4, 1' % (t1, ln))
    A('v_lshl_add_u32 v%d, v%d, 3, v%d' % (wa[0], t1, dl))
    A('v_bfe_u32 v%d, v%d, 3, 1' % (dl, ln))
    A('v_lshlrev_b32 v%d, 11, v%d' % (dl, dl))
    for i in range(1, 4):
        A('v_xor_b32 v%d, %d, v%d' % (wa[i], 32 * i, wa[0]))
    for x in out[k0:]:
        x.prio = -70000
    steps = []
    prev = [None]
    stores = []

    def ds(x):
        x.prio = opt.epi_prio
        if prev[0] is not None:
            x.after.append(prev[0])
        prev[0] = x
        out.append(x)
    used = {}
    seen = set()
    freed = []
    parked = False
    for k, pair in enumerate(order or epi_order(T, Tn)):
        if (pair[0][1] < 3 or order is not None) != parked:
            parked = not parked
            for i in range(4):
                A('v_%s_u32 v%d, v%d, v%d' % ('add' if parked else 'sub', wa[i], wa[i], dl))
                out[-1].prio = -70000
        done = []
        for tt in range(4):
            xs = []
            steps.append([])
            for j, (c, u) in enumerate(pair):
                fl, o0 = O(u, 4 * c + tt)
                if fl == 'a':
                    cand = [q for q in pool(len(steps) - 1) + freed if q not in xs]
                    x = min(cand, key=lambda q: used.get(q, -1))
                    for i in range(4):
                        A('v_accvgpr_read_b32 v%d, a%d' % (x + i, o0 + i))
                else:
                    x = o0
                    done.append(x)
                used[x] = len(steps)
                for i in (0, 2):
                    A('v_pk_mul_f32 v[%d:%d], v[%d:%d], v[%d:%d] op_sel_hi:[1,0]' % (x + i, x + i + 1, x + i, x + i + 1, inv[u], inv[u] + 1))
                    out[-1].reads.discard(('v', inv[u] + 1))
                    steps[-1].append(out[-1])
                A('v_cvt_pk_bf16_f32 v%d, v%d, v%d' % (x, x, x + 1))
                A('v_cvt_pk_bf16_f32 v%d, v%d, v%d' % (x + 1, x + 2, x + 3))
                xs.append(x)
            offs = [u % 3 * 6144 + c * 1024 if parked else STG + 2048 * j for j, (c, u) in enumerate(pair)]
            if len(pair) == 2:
                w = I('ds_write2st64_b64 v%d, v[%d:%d], v[%d:%d] offset0:%d offset1:%d' %
                      (wa[tt], xs[0], xs[0] + 1, xs[1], xs[1] + 1, offs[0] // 512, offs[1] // 512))
            else:
                w = I('ds_write_b64 v%d, v[%d:%d] offset:%d' % (wa[tt], xs[0], xs[0] + 1, offs[0]))
            for c, u in pair:
                if u not in seen:
                    seen.add(u)
                    w.after += gate.get(u, [])
            ds(w)
        freed += done
        for j, (c, u) in enumerate(pair):
            if parked and not last:
                continue
            rb = []
            for rho in range(2):
                rb.append(min(pool(len(steps) + 1) + freed, key=lambda q: used.get(q, -1)))
                used[rb[-1]] = len(steps) + 2
                ds(I('ds_read_b128 %s, v%d offset:%d' % (vr(rb[rho]), vPR, offs[j] + rho * (3072 if parked else 1024))))
            for rho in range(2):
                st = I('buffer_store_dwordx4 %s, v%d, s[%d:%d], s%d offen offset:%d%s' %
                       (vr(rb[rho]), vOG, SRD_O, SRD_O + 3, sOu[u], rho * 3072 + c * 128, pol(opt.pol_o)), vm_id=('st',))
                out.append(st)
                stores.append(st)
    return out, stores, steps


def phase_B(T, Tn, last, more=()):
    chain = [None]
    prog = [I('s_add_u32 s%d, s%d, %d' % (sOu[u], sOc, u * 6144)) for u in (range(T) if last else range(3, T))]
    chain_seq(prog, chain)
    fo = flag_ops(T)
    chain_seq([x for x in fo if x.kind == 'salu'], chain)
    prog += fo
    pv, mf, vre = pv_stream(T, 1, 0, False, 4)
    for r in vre:
        r.prio = -60000
    w2 = vm_wait([('qg', 5)])
    w2.prio = -50000
    w2.notbefore = opt.q2wait_t if not last else 0
    gate = {}
    vm = []
    if last:
        gate = {u: [w2] for u in range(3)}
        prog.append(w2)
    else:
        if Tn == 5:
            d, vm = q_late(4, 1, chain, 60)
            prog += d
        w2.after += vm
        prog.append(w2)
        q2 = q_reads(2, 2)
        for r in q2:
            r.after.append(w2)
            r.prio = -50000
        prog += q2
        gate[2] = q2
    prog += pv
    qk, qkm = [], []
    if not last:
        w, bar = barrier([('k', 16)], vm + [w2], opt.yb_t, done=vre)
        prog += [w, bar]
        d, dm = dma_tile('v', 16, 0, chain, opt.yb_t + 100, opt.yb_t + 500, after=[bar], src=sNx0)
        prog += d
        if not opt.v2c:
            d, dm2 = dma_tile('v', 18, 2, chain, opt.yb_t + 500, opt.yb_t + 1100)
            prog += d
        prevw = dm
        for u, place, t in ((3, 0, opt.q3wait_t), (4, 1, opt.q4wait_t))[:Tn - 3]:
            wq = vm_wait([('ql', u)])
            wq.prio = -50000
            wq.notbefore = t
            wq.after += prevw
            prevw = [wq]
            prog.append(wq)
            rd = q_reads(u, place)
            for r in rd:
                r.after.append(wq)
                r.prio = -50000
            prog += rd
            gate[place] = rd
        qk, qkm, kre = qk_stream([range(3), range(3, Tn)] if opt.sweeps == 2 else [range(Tn)], 0, 0)
        for r in kre[:8]:
            r.after.append(bar)
    allm = mf + qkm + list(more)
    span = len(mf) + len(qkm) + min(len(more), opt.bc_extra)
    order = epi_order(T, Tn)
    at = {x.tag[1:]: i for i, x in enumerate(mf)}
    need = [max(at[4 * c + tt, u] for c, u in pair) for pair in order for tt in range(4)]
    ns = len(need)
    pos = []
    for s_ in range(ns):
        even = int(round(opt.lead * opt.grp + (span - opt.lead * opt.grp) * s_ / max(ns - 1, 1)))
        pos.append(min(span, max(need[s_] + 4, even, pos[-1] if pos else 0)))
    firstw = {}
    for i, m in enumerate(allm):
        if m.tag[0] == 'qk':
            firstw.setdefault(S(m.tag[3], m.tag[1]), i)

    def pool(s_):
        return [S(u, kt) for u in range(5) for kt in range(2) if firstw.get(S(u, kt), 9999) >= pos[min(s_ + 2, ns - 1)]]
    ep, stores, steps = epilogue(T, Tn, last, gate, pool)
    for s_, burst in enumerate(steps):
        for x in burst:
            x.after.append(allm[pos[s_] - 1])
        if pos[s_] < len(allm):
            allm[pos[s_]].after += burst
    prog += ep
    if not last:
        prog += qk
        o = new_pass(False)
        chain_seq(o, chain)
        prog += o
    return prog


def phase_E(T):
    chain = [None]
    prog = [I('s_add_u32 s%d, s%d, %d' % (sOu[u], sOc, u * 6144)) for u in range(T)]
    chain_seq(prog, chain)
    prog.append(I('v_subrev_u32 v%d, %d, v%d' % (vPR, STG, vPR)))
    w, bar = barrier([('v', 15), ('qg', 5)], [], 0)
    prog += [w, bar]
    sm = sm_body(T, 1, hoist(T))[0]
    groups = [[int(c) for c in g] for g in (opt.endg5 if T == 5 else opt.endg4).split(',')]
    allm = []
    n = 4
    for k, g in enumerate(groups):
        for x in sm:
            if (min(x.reads & {('v', r) for r in range(SREG, SREG + 40)})[1] - SREG) // 8 in g:
                x.prio = -80000 + 5000 * k
                prog.append(x)
        e = 0
        for t in range(12):
            reg = {}
            for u in (g if t % 2 == 0 else g[::-1]):
                for e in (e, 1 - e):
                    if e not in reg:
                        reg[e] = n
                        rd = v_reads(2 if e == 0 else 0, 0, t, t + 1, n - t)
                        n += 1
                        for r in rd:
                            r.after.append(bar)
                            r.prio = -60000
                        prog += rd
                    m = I('v_mfma_f32_16x16x32_bf16 %s, %s, %s, %s' % (Oq(u, t), ar(fr(reg[e])), vr(Pop(u, e)), Oq(u, t)), tag=('pv', t, u))
                    prog.append(m)
                    allm.append(m)
    prog += sums(T, 1)
    fo = flag_ops(T)
    chain_seq([x for x in fo if x.kind == 'salu'], chain)
    prog += fo
    order = []
    for g in groups:
        cs = [(c, u) for c in range(3) for u in g]
        order += [tuple(cs[i:i + 2]) for i in range(0, len(cs), 2)]
    at = {x.tag[1:]: i for i, x in enumerate(allm)}
    need = [max(at[4 * c + tt, u] for c, u in pair) for pair in order for tt in range(4)]
    pos = []
    for s_ in range(len(need)):
        even = int(round(need[0] + 4 + (len(allm) - need[0] - 4) * s_ / (len(need) - opt.end_tail)))
        pos.append(min(len(allm), max(need[s_] + 4, even, pos[-1] if pos else 0)))
    pool = lambda s_: [S(u, kt) for u in range(5) for kt in range(2) if (u, kt) != (0, 0) and (u >= T or u in groups[0] or s_ >= 12)]
    ep, stores, steps = epilogue(T, 0, True, {}, pool, order)
    for s_, burst in enumerate(steps):
        for x in burst:
            x.after.append(allm[pos[s_] - 1])
        if pos[s_] < len(allm):
            allm[pos[s_]].after += burst
    return prog + ep


def delay(prog, dt):
    for x in prog:
        if x.notbefore > 0:
            x.notbefore += dt
    return prog


def phase_BC(T, Tn):
    pc = delay(phase_C(Tn, 16, [('v', 18)] if opt.v2c else []), opt.b_len5 if T == 5 else opt.b_len4)
    pb = phase_B(T, Tn, False, [x for x in pc if x.kind == 'mfma' and not x.floating])
    bar = [x for x in pb if x.kind == 'barrier']
    k0 = [x for x in pb if x.kind == 'mfma' and x.tag[0] == 'qk'][-1:]
    for x in pc:
        if x.kind in ('ds', 'dma', 'barrier'):
            x.after += bar
        if x.kind == 'barrier':
            x.after += k0
        if x.kind == 'wait':
            x.after += [y for y in pb if y.kind == 'dma']
    return pb + pc


def phase_C(T, n0, extra=()):
    chain = [None]
    prog = []
    H = 16 * 13 * T + 4 * 44 * T
    vm = []
    for k, (kind, n) in enumerate(extra):
        d, dm = dma_tile(kind, n, (n - n0) % 3, chain, 32 + 400 * k, 32 + 400 * (k + 1))
        prog += d
        vm += dm
    prog += max_init(T)
    pre, post = sm_body(T, 0, 0)
    prog += pre + post
    prog += sums(T, 0, True)
    qk, qkm, kre = qk_stream([range(T)], 1)
    for r in kre[:4]:
        r.prio = -50000
    for x in pre:
        if x.op == 'v_fma_f32':
            u, kt = divmod((min(x.writes)[1] - SREG) // 4, 2)
            if kt and 6 * u - opt.c_lead >= 0:
                x.after.append(qkm[6 * u - opt.c_lead])
    prog += qk
    w, bar = barrier([('v', n0)], vm, H - 16 * 24)
    prog += [w, bar]
    d, dm = dma_tile('k', n0 + 3, 0, chain, H - 16 * 22, H - 16 * 4, after=[bar])
    prog += d
    prog += sm_head(T, 1)
    prog += early_v(0, 0, H, T, bar)
    return prog


def start_pre():
    o = []
    o.append(I('s_mov_b32 s%d, s%d' % (sQp, sQn)))
    for it in opt.order0 if not opt.start2 else opt.order2:
        if it in 'kKL':
            u = 'kKL'.index(it)
            o += dma_tile('k', u, u, [None], 0, 0)[0]
        elif it == 'v':
            o += dma_tile('v', 0, 0, [None], 0, 0)[0]
        else:
            u = 'qQR'.index(it)
            for rg in range(2):
                o += q_group(sQOw, u * 6144 + rg * 3072, ('q0', u))
    for x in o:
        x.after = []
    if opt.ipre and opt.ilate:
        o += code_touch()
    o += late_addr() + [I('L_first:')]
    o.append(vm_wait([('k', 1)]))
    o.append(I('s_barrier'))
    return o


def phase_S(T):
    chain = [None]
    prog = []
    later = [('q', u) for u in range(2, T)] + [('v', 0), ('k', 2), ('v', 1), ('v', 2)]
    prev = []
    nxt = 0
    issued = {}
    tail = []
    rds = {}
    mx = max_init(T)
    pre, _ = sm_body(T, 0, 0)
    base = 0
    for u in range(T + 1):
        if u < T:
            w = vm_wait([('q0', u)])
            w.prio = -100000
            w.after += prev + issued.get(u, [])
            prog.append(w)
            rd = q_reads(u, u % 3)
            rds[u] = rd
            for r in rd:
                r.after.append(w)
                r.prio = -195000
            prog += rd
            for _ in range(1 if u < T - 2 else 2):
                it = later[nxt]
                nxt += 1
                if it[0] == 'q':
                    d = []
                    for rg in range(2):
                        d += q_group(sQOw, (it[1] % 3) * 6144 + rg * 3072, ('q0', it[1]))
                    chain_seq(d, chain)
                else:
                    d, _ = dma_tile(it[0], it[1], it[1], chain, 0, 0)
                dm = [x for x in d if x.kind == 'dma']
                for x in d:
                    x.prio = -190000
                for x in dm:
                    x.after.append(w)
                    if it[0] == 'q' and it[1] >= 3:
                        x.reads = x.reads | set().union(*[r.writes for r in rds[it[1] - 3]])
                if it[0] == 'q':
                    issued[it[1]] = dm
                else:
                    tail += dm
                prog += d
            qk, qk0, _ = qk_stream([[u]], 0, base)
            base += 12
            prog += qk
            prev = qk0[-1:]
            prog += mx[11 * u:11 * u + 11]
            prog += [x for x in pre if min(x.reads & {('v', r) for r in range(SREG, SREG + 40)})[1] // 8 == SREG // 8 + u]
        if u > 0:
            if u == T:
                base += (4 - base) % 8
            qk, qk1, _ = qk_stream([[u - 1]], 1, base)
            base += 12
            prog += qk
            if u < T - 1:
                prev = qk1[-1:]
    assert nxt == len(later)
    prog += sums(T, 0, True)
    o = new_pass(True)
    chain_seq(o, chain)
    prog += o
    w, bar = barrier([('v', 0)], tail + qk0[-1:], 0)
    prog += [w, bar]
    d, dm = dma_tile('k', 3, 0, chain, 0, 0, after=[bar])
    prog += d
    prog += sm_head(T, 1)
    prog += early_v(0, 0, 0, T, bar)
    return prog


def phase_S2(T):
    chain = [None]
    prog = []
    rds = {}
    mx = max_init(T)
    sm = [sm_body(T, b, 0)[0] for b in range(2)]
    mine = lambda b, u: [x for x in sm[b] if min(x.reads & {('v', r) for r in range(SREG, SREG + 40)})[1] // 8 == SREG // 8 + u]
    ring = [0]
    last = [[]]

    def load(it, w):
        if it[0] == 'q':
            d = []
            for rg in range(2):
                d += q_group(sQOw, (it[1] % 3) * 6144 + rg * 3072, ('q0', it[1]))
            chain_seq(d, chain)
        else:
            d, _ = dma_tile(it[0], it[1], it[1] % 3, chain, 0, 0)
        dm = [x for x in d if x.kind == 'dma']
        for x in d:
            x.prio = -190000
        for x in dm:
            x.after.append(w)
            if it[0] == 'q' and it[1] >= 3:
                x.reads = x.reads | set().union(*[r.writes for r in rds[it[1] - 3]])
        prog.extend(d)
        return dm

    def qk(g, n, bar=None, base=None):
        d, mf, rd = qk_stream([g], n, ring[0] if base is None else base)
        ring[0] += 12
        for r in rd[:8]:
            r.after += [bar] if bar else []
        prog.extend(d)
        last[0] = mf[-1:]
        return rd

    def pv(g, bar):
        rd = []
        for t in range(12):
            r = v_reads(0, 0, t, t + 1, ring[0])
            for x in r:
                x.after.append(bar)
            ms = [I('v_mfma_f32_16x16x32_bf16 %s, %s, %s, 0' % (Oq(u, t), ar(fr(ring[0] + t)), vr(Pop(u, 0))), tag=('pv', t, u))
                  for u in (g if t % 2 == 0 else g[::-1])]
            prog.extend(r + ms)
            rd += r
            last[0] = ms[-1:]
        ring[0] += 12
        return rd
    plan = {0: [('q', 2)], 1: [('q', 3)], 2: [('q', 4)] if T == 5 else [('v', 1)],
            3: [('v', 1)] if T == 5 else [('v', 2)], 4: [('v', 2)]}
    if 'R' in opt.order2:
        plan = {u: plan.get(u + 1, []) if u + 1 < T else [] for u in range(T)}
    vm = []
    groups = [[int(c) for c in g] for g in (opt.groups5 if T == 5 else opt.groups4).split(',')]
    for g in groups:
        for u in g:
            w = vm_wait([('q0', u)])
            w.prio = -100000
            w.after += last[0] + vm
            prog.append(w)
            rds[u] = q_reads(u, u % 3)
            for r in rds[u]:
                r.after.append(w)
                r.prio = -195000
            prog += rds[u]
            for it in plan[u]:
                vm = load(it, w) or vm
        k0 = qk(g, 0)
        for u in g:
            prog += mx[11 * u:11 * u + 11] + mine(0, u)
        if g is groups[-1]:
            w, ba = barrier([('v', 1)], vm, 0, done=k0)
            prog += [w, ba]
            d, vm = dma_tile('k', 3, 0, chain, 0, 0, after=[ba])
            prog += d
        k1 = qk(g, 1)
        for u in g:
            prog += mine(1, u)
        if g is groups[0]:
            w, b1 = barrier([('k', 2), ('v', 0)], last[0] + vm, 0)
            prog += [w, b1]
        v0 = pv(g, b1)
        if g is not groups[-1]:
            qk(g, 2, b1)
    o = new_pass(True)
    chain_seq(o, chain)
    prog += o
    w, bb = barrier([('v', 1)], vm, 0, done=v0 + k1)
    prog += [w, bb]
    prog += dma_tile('v', 3, 0, chain, 0, 0, after=[bb])[0] + dma_tile('k', 4, 1, chain, 0, 0, after=[bb])[0]
    prog += sums(T, 0, True) + sums(T, 1)
    qk(groups[-1], 2, None, 4)
    prog += sm_head(T, 0)
    prog += early_v(1, 1, 0, T, bb)
    return prog


def fixup_code():
    o = []
    A = lambda t: o.append(I(t))
    sP, sU, sN, sKo, sNT = 50, 51, 52, 53, 55
    vM, vA, vG = TMP, TMP + 1, TMP + 2
    va = [O2 + i for i in range(4)]
    A('L_fix:')
    A('s_sub_u32 s%d, s%d, %d' % (sT0, sQOw, VBASE))
    for m in range(4):
        A('v_add_u32 v%d, s%d, v%d' % (va[m], sT0, vVA[m]))
    A('v_mbcnt_lo_u32_b32 v%d, -1, 0' % vX)
    A('v_mbcnt_hi_u32_b32 v%d, -1, v%d' % (vX, vX))
    A('v_and_b32 v%d, 15, v%d' % (vA, vX))
    A('v_mul_u32_u24 v%d, 384, v%d' % (vA, vA))
    A('v_lshrrev_b32 v%d, 4, v%d' % (vG, vX))
    A('v_lshl_add_u32 v%d, v%d, 3, v%d' % (vG + 1, vG, vA))
    A('v_lshl_add_u32 v%d, v%d, 4, v%d' % (vA, vG, vA))
    A('L_fix_pass:')
    A('s_ff1_i32_b32 s%d, s%d' % (sP, sFlag))
    A('s_bitset0_b32 s%d, s%d' % (sFlag, sP))
    o.extend(item_calc(sP))
    A('s_add_u32 s%d, s%d, 4' % (sNT, sT5))
    A('s_mov_b32 s%d, 0' % sU)
    A('L_fix_tile:')
    for ks in range(6):
        A('buffer_load_dwordx4 %s, v%d, s[%d:%d], s%d offen offset:%d' % (Qr(0, ks), vA, SRD_Q, SRD_Q + 3, sQn, ks * 64))
    A('v_mov_b32 v%d, 0xff800000' % vM)

    def tile(srd):
        A('s_mov_b32 s%d, s%d' % (sT1, sKo))
        for rg in range(4):
            A('s_add_u32 m0, s%d, %d' % (sQOw, rg * 3072))
            for c in range(3):
                A('buffer_load_dwordx4 v%d, s[%d:%d], s%d offen offset:%d lds' % (vD[c], srd, srd + 3, sT1, c * 1024))
            A('s_add_u32 s%d, s%d, 3072' % (sT1, sT1))
        A('s_waitcnt vmcnt(0)')

    def scores():
        tile(SRD_K)
        for kt in range(2):
            for ks in range(6):
                A('ds_read_b128 %s, v%d offset:%d' % (ar(OA + 4 * (kt * 6 + ks)), vQA[ks % 2], kt * 6144 + (ks // 2) * 128))
        A('s_waitcnt lgkmcnt(0)')
        for kt in range(2):
            for ks in range(6):
                A('v_mfma_f32_16x16x32_bf16 %s, %s, %s, %s' % (vr(S(0, kt)), ar(OA + 4 * (kt * 6 + ks)), Qr(0, ks), vr(S(0, kt)) if ks else '0'))
        A('s_nop 7')
    s = [S(0, kt) + i for kt in range(2) for i in range(4)]

    def keys_from():
        A('s_mov_b32 s%d, s%d' % (sKo, sKV))
        A('s_mov_b32 s%d, 0' % sN)

    def keys_next(label):
        A('s_add_u32 s%d, s%d, %d' % (sKo, sKo, TILE))
        A('s_add_u32 s%d, s%d, 1' % (sN, sN))
        A('s_cmp_lt_u32 s%d, 16' % sN)
        A('s_cbranch_scc1 %s' % label)
    keys_from()
    A('L_fix_max:')
    scores()
    for i in range(0, 8, 2):
        A('v_max3_f32 v%d, v%d, v%d, v%d' % (vM, vM, s[i], s[i + 1]))
    keys_next('L_fix_max')
    A('v_mov_b32 v%d, v%d' % (vX, vM))
    A('v_permlane32_swap_b32 v%d, v%d' % (vX, vM))
    A('v_max_f32 v%d, v%d, v%d' % (vM, vM, vX))
    A('v_mov_b32 v%d, v%d' % (vX, vM))
    A('v_permlane16_swap_b32 v%d, v%d' % (vX, vM))
    A('v_max_f32 v%d, v%d, v%d' % (vM, vM, vX))
    A('v_mul_f32_e64 v%d, -s%d, v%d' % (vNM[0], sC, vM))
    for i in range(48):
        A('v_mov_b32 v%d, 0' % (OV + i))
    for i in range(4):
        A('v_mov_b32 v%d, 0' % (TS + i))
        A('v_mov_b32 v%d, 0' % (Pop(1, 0) + i))
    keys_from()
    A('L_fix_acc:')
    scores()
    for kt in range(2):
        for h in range(2):
            o.extend(sm_exp(0, kt, h) + [sm_cvt(0, kt, h, 0)])
    A('v_smfmac_f32_16x16x64_bf16 %s, %s, %s, v%d' % (vr(TS), ar(aSEL), vr(Pop(0, 0), 8), vIDX))
    tile(SRD_V)
    for t in range(12):
        for h in range(2):
            A('ds_read_b64_tr_b16 %s, v%d offset:%d' % (ar(OA + 4 * t + 2 * h, 2), va[t % 4], (t // 4) * 128 + h * 6144))
    A('s_waitcnt lgkmcnt(0)')
    for t in range(12):
        A('v_mfma_f32_16x16x32_bf16 %s, %s, %s, %s' % (Oq(0, t), ar(OA + 4 * t), vr(Pop(0, 0)), Oq(0, t)))
    keys_next('L_fix_acc')
    A('s_nop 7')
    A('v_add_f32 v%d, v%d, v%d' % (vX, TS, TS + 1))
    A('v_rcp_f32 v%d, v%d' % (vX, vX))
    for t in range(12):
        x = OV + 4 * t
        for i in range(4):
            A('v_mul_f32 v%d, v%d, v%d' % (x + i, x + i, vX))
        A('v_cvt_pk_bf16_f32 v%d, v%d, v%d' % (x, x, x + 1))
        A('v_cvt_pk_bf16_f32 v%d, v%d, v%d' % (x + 1, x + 2, x + 3))
        A('buffer_store_dwordx2 %s, v%d, s[%d:%d], s%d offen offset:%d' % (vr(x, 2), vG + 1, SRD_O, SRD_O + 3, sQn, t * 32))
    A('s_waitcnt vmcnt(0)')
    A('s_add_u32 s%d, s%d, 6144' % (sQn, sQn))
    A('s_add_u32 s%d, s%d, 1' % (sU, sU))
    A('s_cmp_lt_u32 s%d, s%d' % (sU, sNT))
    A('s_cbranch_scc1 L_fix_tile')
    A('s_cmp_lg_u32 s%d, 0' % sFlag)
    A('s_cbranch_scc1 L_fix_pass')
    A('s_branch L_done')
    return fix_hazards(o)


class Blk:
    def __init__(self, name, seq):
        self.name = name
        self.seq = seq


FINE = [50, 52, 54, 56, 58, 60, 88, 90, 92, 94, 96, 98, 100]


def prof_mark(k):
    return [I('s_memtime s[92:93]'), I('s_waitcnt lgkmcnt(0)'), I('s_sub_u32 s95, s92, s94'),
            I('s_add_u32 s%d, s%d, s95' % (50 + k, 50 + k)), I('s_mov_b32 s94, s92')]


def rt_mark(extra=0):
    return [I('v_mov_b32 v%d' % vX + ', s92'), I('s_lshl_b32 s95, s%d, 2' % sPn), I('s_add_u32 s95, s95, s98'), I('s_add_u32 s95, s95, %d' % extra),
            I('buffer_store_dword v%d' % vX + ', off, s[80:83], s95')]


def clone_prog(prog):
    m = {}
    for x in prog:
        y = Inst(x.text, tag=dict(x.tag) if isinstance(x.tag, dict) else x.tag, prio=x.prio, notbefore=x.notbefore, vm_id=x.vm_id)
        y.kind, y.reads, y.writes, y.floating = x.kind, set(x.reads), set(x.writes), x.floating
        m[id(x)] = y
    for x in prog:
        m[id(x)].after = [m[id(a)] for a in x.after if id(a) in m]
        if x.glue is not None:
            m[id(x)].glue = m[id(x.glue)]
    return [m[id(x)] for x in prog]


def search_schedule(p, hist, tries):
    import random
    best = None
    pend = v_reads(0, 0, 0, opt.vlead)
    for k in range(tries):
        q = clone_prog(p)
        s = schedule(q, history=hist, urgent_ok=False, jitter=None if k == 0 else (random.Random(1000 + k), 16 + 8 * (k % 8)))
        w, _ = insert_lgkm_waits(s, pending=pend)
        e = estimate(fix_hazards(w, history=hist) + w[:12])
        if best is None or e < best[0]:
            best = (e, s)
    return best[1]


def search_dense(p, hist):
    import random
    best = None
    pend = v_reads(0, 0, 0, opt.vlead) + v_reads(0, 0, 0, opt.vlead, 4)
    keep = asmlib.DENSE_M, asmlib.DENSE_W0, asmlib.DENSE_W
    for k in range(opt.tries_tr):
        rng = random.Random(77 + k)
        if k:
            asmlib.DENSE_M, asmlib.DENSE_W0, asmlib.DENSE_W = rng.choice((8, 16, 24, 40)), rng.choice((0, 0, 12, 24)), rng.choice((40, 80, 120))
        s = schedule_dense(clone_prog(p), history=hist, verbose=opt.verbose and opt.tries_tr == 1,
                           jitter=(rng, rng.choice((8, 30, 60, 120))) if k else None)
        w, _ = insert_lgkm_waits(s, pending=pend)
        e = estimate(fix_hazards(merge_waits(w), history=hist))
        for x in s:
            if isinstance(x.tag, dict) and 'lgkm' in x.tag:
                x.tag = {'need': x.tag['need']}
                x.text = 's_waitcnt vmcnt(0)'
        if best is None or e < best[0]:
            best = (e, s)
    asmlib.DENSE_M, asmlib.DENSE_W0, asmlib.DENSE_W = keep
    return best[1]


def chain_blocks(parts, tries=1, occ=0):
    out = []
    asmlib.LDS_OCC = occ
    for part in parts:
        kind, p = part[0], part[1]
        if kind == 'd':
            asmlib.LDS_LAT = opt.lds_lat_tr
            out += search_dense(p, out[-24:])
            asmlib.LDS_LAT = opt.lds_lat
            if opt.prof and len(part) > 2:
                out += prof_mark(part[2])
        elif kind == 's':
            if tries > 1:
                out += search_schedule(p, out[-24:], tries)
            else:
                out += schedule(p, history=out[-24:], verbose=opt.verbose, urgent_ok=False)
            if opt.prof and len(part) > 2:
                out += prof_mark(part[2])
        else:
            out += p
    return out


def NW():
    return 2 if opt.wshift else 1


def build():
    pro = []
    prologue(pro)
    blocks = {'first': Blk('first', start_pre() + [I('s_cmp_eq_u32 s%d, 0' % sT5), I('s_cbranch_scc1 L_start4')])}
    for T in (5, 4):
        nm = 'start%d' % T
        run_up = [('d', phase_S2(T))] if opt.start2 else [('d', phase_S(T)), ('s', phase_iter(T, 1))]
        parts = [('r', [I('L_%s:' % nm)])] + run_up + [('s', phase_iter(T, 2)),
                 ('r', (prof_mark(0) if opt.prof else []) + [I('s_mov_b32 s%d, 0' % sTrip), I('s_branch L_loop%d' % T)])]
        blocks[nm] = Blk(nm, chain_blocks(parts, 1, opt.lds_occ_tr))
        for w in range(NW()):
            nm = 'loop%dw%d' % (T, w)
            head = []
            if w == 0:
                head = [I('L_loop%d:' % T)]
                if NW() == 2:
                    head += [I('s_bitcmp1_b32 s%d, %d' % (sW, opt.wbit)), I('s_cbranch_scc1 L_loop%dw1' % T)]
            parts = [('r', head + [I('.p2align 6'), I('L_%s:' % nm)])]
            for j in range(3, 9):
                tail, vtail = [], []
                if j == 8:
                    tail = [I('s_add_u32 s%d, s%d, 1' % (sTrip, sTrip)), I('s_cmp_lt_u32 s%d, 2' % sTrip)]
                    vtail = [I('v_add_u32 v%d, 9216, v%d' % (vPR, vPR))]
                parts.append(('s', phase_iter(T, j, qo=((j - 3) // 2,), tail=tail, vtail=vtail, shift=w * opt.wshift, loop=True)))
                if opt.pad and j < 8:
                    parts.append(('r', [I('s_nop 15') for _ in range(opt.pad)]))
            ex = [I('s_cbranch_scc1 L_%s' % nm)] + (prof_mark(1 if T == 5 else 5) + rt_mark() if opt.prof else [])
            ex += [I('s_cmp_ge_u32 s%d, %d' % (sPn, NPASS)), I('s_cbranch_scc1 L_end%d' % T),
                   I('s_cmp_eq_u32 s%d, 0' % sT5), I('s_cbranch_scc1 L_tr%d4' % T), I('s_branch L_tr%d5' % T)]
            parts.append(('r', ex))
            blocks[nm] = Blk(nm, chain_blocks(parts, opt.tries, opt.lds_occ))
        nm = 'end%d' % T
        parts = [('r', [I('L_%s:' % nm)]), ('d', phase_A(T, 0, True), 2), ('d', phase_B(T, 0, True), 3), ('r', [I('s_branch L_fin')])]
        if opt.end2:
            parts[1:3] = [('d', phase_E(T), 3)]
        elif opt.endm:
            parts[1:3] = [('d', parts[1][1] + parts[2][1], 3)]
        keep = asmlib.STGAP, asmlib.STW, asmlib.LDSW, asmlib.LDSW2
        asmlib.STGAP, asmlib.STW, asmlib.LDSW, asmlib.LDSW2 = [int(x) for x in opt.endp.split(',')]
        blocks[nm] = Blk(nm, chain_blocks(parts, 1, opt.lds_occ_tr))
        asmlib.STGAP, asmlib.STW, asmlib.LDSW, asmlib.LDSW2 = keep
    for T, Tn in ((5, 4), (4, 5), (4, 4), (5, 5)):
        nm = 'tr%d%d' % (T, Tn)
        parts = [('r', [I('L_%s:' % nm)]), ('d', phase_A(T, Tn, False), 2), ('d', phase_BC(T, Tn), 3),
                 ('s', phase_iter(Tn, 1, 16)), ('s', phase_iter(Tn, 2, 16)),
                 ('r', (prof_mark(4) + rt_mark(28) if opt.prof else []) + [I('s_mov_b32 s%d, 0' % sTrip), I('s_branch L_loop%d' % Tn)])]
        blocks[nm] = Blk(nm, chain_blocks(parts, 1, opt.lds_occ_tr))
    asmlib.LDS_OCC = 0

    canon = v_reads(0, 0, 0, opt.vlead)
    for nm, blk in blocks.items():
        blk.seq, _ = insert_lgkm_waits(blk.seq, pending=[] if nm.startswith(('start', 'first')) else canon)
        blk.seq = merge_waits(blk.seq)
    l5 = ['loop5w%d' % w for w in range(NW())]
    l4 = ['loop4w%d' % w for w in range(NW())]
    preds = {'first': [], 'start5': ['first'], 'start4': ['first'], 'end5': l5, 'end4': l4, 'tr54': l5, 'tr45': l4, 'tr44': l4, 'tr55': l5}
    for x in l5:
        preds[x] = ['start5', x, 'tr45', 'tr55']
    for x in l4:
        preds[x] = ['start4', x, 'tr54', 'tr44']
    for nm, blk in blocks.items():
        for p in preds[nm] or [None]:
            hist = blocks[p].seq[-30:] if p else pro[-30:]
            blk.seq = fix_hazards(blk.seq, history=list(hist))
    problems = []
    for nm, blk in blocks.items():
        for p in preds[nm]:
            cat = blocks[p].seq + blk.seq
            problems += check_hazards(cat, p + '+' + nm)
            problems += verify_lgkm(cat, p + '+' + nm)
    if problems:
        for p in problems[:40]:
            print('PROBLEM', p, file=sys.stderr)
        raise SystemExit('hazards found')
    resolve_vm(blocks)
    if NW() == 1 and opt.onerole < 0 and not opt.nobar:
        verify_rings(blocks)
    if opt.fine:
        for nm in opt.fine.split(','):
            blk = blocks[nm]
            seq = blk.seq
            st = asmlib.new_state()
            tm = []
            for c in seq:
                t = st['slot']
                if c.kind not in ('label', 'directive'):
                    t = asmlib.issue_time(None, None, c, st)
                    asmlib.commit(c, t, st)
                tm.append(t)
            lo, hi = opt.fine_lo, min(opt.fine_hi, tm[-1])
            out = []
            k = 0
            marks = []
            for i, c in enumerate(seq if opt.fine_vm else []):
                out.append(c)
                if (i == 1 or c.kind == 'barrier' or (c.kind == 'wait' and isinstance(c.tag, dict)) or i == len(seq) - 2) and k < len(FINE):
                    out.append(I('s_memtime s[%d:%d]' % (FINE[k], FINE[k] + 1)))
                    marks.append(tm[i])
                    k += 1
            if opt.fine_vm:
                seq = []
            for i, c in enumerate(seq if opt.fine_bar else []):
                isw = c.kind == 'wait' and isinstance(c.tag, dict) and any(x.kind == 'barrier' for x in seq[i + 1:i + 4])
                if (isw or i == 1) and k < len(FINE):
                    out.append(I('s_memtime s[%d:%d]' % (FINE[k], FINE[k] + 1)))
                    marks.append(tm[i])
                    k += 1
                out.append(c)
                if (c.kind == 'barrier' or i == len(seq) - 2) and k < len(FINE):
                    out.append(I('s_memtime s[%d:%d]' % (FINE[k], FINE[k] + 1)))
                    marks.append(tm[i])
                    k += 1
            while opt.fine_bar and k < len(FINE):
                out.insert(len(out) - 1, I('s_memtime s[%d:%d]' % (FINE[k], FINE[k] + 1)))
                k += 1
            for i, c in enumerate(seq if not opt.fine_bar else []):
                out.append(c)
                if k < len(FINE) and tm[i] >= lo + (hi - lo) * k / (len(FINE) - 1) - 1 and (c.kind == 'mfma' or i == len(seq) - 2 or
                                                                                       tm[i] > lo + (hi - lo) * k / (len(FINE) - 1) + 40):
                    out.append(I('s_memtime s[%d:%d]' % (FINE[k], FINE[k] + 1)))
                    marks.append(tm[i])
                    k += 1
            blk.seq = out
            print('fine %s model:' % nm, ' '.join('%5d' % (b - a) for a, b in zip(marks, marks[1:])), ' from', marks[0], file=sys.stderr)
    if opt.around:
        nm, rx, first, span = opt.around.split(':')
        out = []
        k = n = 0
        left = -1
        for x in blocks[nm].seq:
            if left < 0 and re.match(rx, x.text):
                n += 1
                if n > int(first) and k < 12:
                    out.append(I('s_memtime s[%d:%d]' % (FINE[k], FINE[k] + 1)))
                    left = int(span)
                    print('around:', end=' ', file=sys.stderr)
            out.append(x)
            if left >= 0:
                print(x.text.split('_bf16')[0][:24], end=' | ', file=sys.stderr)
                left -= 1
                if left < 0:
                    out.append(I('s_memtime s[%d:%d]' % (FINE[k + 1], FINE[k + 1] + 1)))
                    k += 2
                    print(file=sys.stderr)
        blocks[nm].seq = out
        opt.fine = 'x'
    for pat in [x for x in opt.drop.split(',') if x]:
        for nm, blk in blocks.items():
            blk.seq = [x for x in blk.seq if not re.match(pat, x.text)]
    if opt.align:
        for nm, blk in blocks.items():
            blk.seq = [I('.p2align 3')] + align8(blk.seq, nm if opt.verbose else '')
    L = [text_of(fix_hazards(pro))]
    for nm in ['first', 'start5', 'start4'] + l5 + ['tr54', 'tr55'] + l4 + ['tr45', 'tr44', 'end5', 'end4']:
        L.append(text_of(blocks[nm].seq))
        if opt.verbose:
            s = blocks[nm].seq
            print('%-7s %5d instrs, %4d mfma, est %6d cycles' % (nm, len(s), sum(1 for x in s if x.kind == 'mfma'), estimate(s)), file=sys.stderr)
    fin = [I('L_fin:'), I('s_waitcnt vmcnt(0)')]
    if opt.stamps:
        fin += stamp_code()
    fin.append(I('L_stamped:'))
    if opt.force:
        fin.append(I('s_mov_b32 s%d, 0x3f' % sFlag))
    fin += [I('s_cmp_lg_u32 s%d, 0' % sFlag), I('s_cbranch_scc1 L_fix'), I('L_done:'), I('L_end:'), I('s_endpgm')]
    L.append(text_of(fin))
    L.append(text_of(fixup_code()))
    L.append('L_codeend:')
    return '\n'.join(L)


def stamp_code():
    o = []
    A = lambda t: o.append(I(t))
    A('s_memrealtime s[76:77]')
    A('s_memtime s[78:79]')
    A('s_waitcnt lgkmcnt(0)')
    if opt.fine:
        A('s_lshl_b32 s68, s2, 8')
        A('s_lshl_b32 s67, s%d, 6' % sW)
        A('s_add_u32 s68, s68, s67')
        A('s_add_u32 s68, s68, 0x30000')
        A('v_mov_b32 v80, s68')
        for k, r in enumerate(FINE):
            A('v_mov_b32 v82, s%d' % r)
            A('buffer_store_dword v82, v80, s[80:83], 0 offen offset:%d' % (4 * k))
            A('s_nop 1')
    A('s_cmp_eq_u32 s%d, 0' % sW)
    A('s_cbranch_scc0 L_stamped')
    A('s_lshl_b32 s68, s2, 6')
    A('v_mov_b32 v80, s68')
    for j, sr in enumerate((74, 72, 74, 72, 78, 76)):
        A('v_mov_b32 v82, s%d' % sr)
        A('v_mov_b32 v83, s%d' % (sr + 1))
        A('buffer_store_dwordx2 v[82:83], v80, s[80:83], 0 offen offset:%d' % (8 * j))
        A('s_nop 1')
    if opt.prof:
        A('s_lshl_b32 s68, s2, 5')
        A('s_add_u32 s68, s68, 0x10000')
        A('v_mov_b32 v80, s68')
        for k in range(6):
            A('v_mov_b32 v82, s%d' % (50 + k))
            A('buffer_store_dword v82, v80, s[80:83], 0 offen offset:%d' % (4 * k))
            A('s_nop 1')
    A('s_waitcnt vmcnt(0)')
    return o


def resolve_vm(blocks):
    waits = {}
    progs = set()
    for j in range(3):
        for w in range(4):
            ts = []
            for n in range(NPASS):
                role = (32 * n + j) * (1 + opt.rev) % 3 if opt.onerole < 0 else opt.onerole
                ts.append(5 if role == 0 or (role == 1 and w == 0) else 4)
            progs.add((tuple(ts), ((w >> opt.wbit) & 1) if NW() == 2 else 0))
    for Ts, wv in sorted(progs):
        trace = [('first', 0, -1, 0), ('start%d' % Ts[0], 0, -1, 0)]
        for p in range(NPASS):
            for k in range(2):
                trace.append(('loop%dw%d' % (Ts[p], wv), 16 * p + 6 * k, p, 3 * k))
            trace.append(('tr%d%d' % (Ts[p], Ts[p + 1]) if p < NPASS - 1 else 'end%d' % Ts[p], 16 * p, p, 0))
        q = []
        waited = set()
        for nm, base, p, gb in trace:
            def res(i):
                if i[0] in ('k', 'v'):
                    n = base + i[1]
                    if nm.startswith('loop') and n >= 16 * p + 16:
                        n += 1
                    return (i[0], n)
                if i[0] == 'qg':
                    return ('qg', gb + i[1], p)
                return tuple(i) + (p,)
            for c in blocks[nm].seq:
                if c.vm_id is not None:
                    if res(c.vm_id) in waited:
                        raise SystemExit('vm id %s issued after a wait that covers it (%s in %s)' % (res(c.vm_id), c.text, nm))
                    q.append(res(c.vm_id))
                if c.kind == 'wait' and isinstance(c.tag, dict) and 'need' in c.tag:
                    need = [res(i) for i in c.tag['need']]
                    waited.update(need)
                    idx = -1
                    for n_ in need:
                        where = [j for j, x in enumerate(q[-200:]) if x == n_]
                        if not where:
                            raise SystemExit('vm id %s never issued (%s in %s)' % (n_, c.text, nm))
                        idx = max(idx, where[-1])
                    cnt = len(q[-200:]) - idx - 1
                    waits.setdefault(id(c), [c, 63])
                    waits[id(c)][1] = min(waits[id(c)][1], cnt)
    for c, n in waits.values():
        c.text = 's_waitcnt vmcnt(%d)' % n + (' lgkmcnt(%d)' % c.tag['lgkm'] if 'lgkm' in c.tag else '')


def verify_rings(blocks):
    for j in range(3):
        ev = []
        for w in (0, 1):
            roles = [(32 * n + j) * (1 + opt.rev) % 3 for n in range(NPASS)]
            Ts = [5 if r == 0 or (r == 1 and w == 0) else 4 for r in roles]
            trace = ['first', 'start%d' % Ts[0]]
            for p in range(NPASS):
                trace += ['loop%dw0' % Ts[p]] * 2 + ['tr%d%d' % (Ts[p], Ts[p + 1]) if p < NPASS - 1 else 'end%d' % Ts[p]]
            epoch = 0
            m0 = None
            vm, ds = [], []
            gen = {}
            fills, landed, first_read, read_done = {}, {}, {}, {}
            for nm in trace:
                for c in blocks[nm].seq:
                    mm = re.match(r's_add_u32 m0, s(\d+), (\d+)', c.text)
                    if mm:
                        r, imm = int(mm.group(1)), int(mm.group(2))
                        m0 = ('k', imm // TILE) if r == sW3 else ('v', imm // TILE) if r == sW3V else None
                    if c.kind == 'barrier':
                        epoch += 1
                    elif c.kind in ('dma', 'vst', 'vld'):
                        key = None
                        if c.kind == 'dma' and m0 is not None:
                            if 'offset:0 ' in c.text + ' ':
                                gen[m0] = gen.get(m0, 0) + 1
                                fills[m0 + (gen[m0],)] = epoch
                            key = m0 + (gen[m0],)
                        vm.append(key)
                    elif c.kind == 'ds':
                        key = None
                        mm = re.match(r'ds_read\S+ \S+ v(\d+) offset:(\d+)', c.text)
                        if mm and int(mm.group(1)) in vKA + vVA:
                            sl = ('k' if int(mm.group(1)) in vKA else 'v', int(mm.group(2)) // TILE)
                            key = sl + (gen[sl],)
                            first_read.setdefault(key, epoch)
                            read_done[key] = None
                        ds.append(key)
                    elif c.kind == 'wait':
                        for q, name, done in ((vm, 'vmcnt', landed), (ds, 'lgkmcnt', read_done)):
                            mm = re.search(name + r'\((\d+)\)', c.text)
                            if mm:
                                n = int(mm.group(1))
                                gone, q[:] = q[:max(0, len(q) - n)], q[max(0, len(q) - n):]
                                for key in gone:
                                    if key is not None and key not in q:
                                        done[key] = epoch
            ev.append((fills, landed, first_read, read_done, epoch))
        assert ev[0][4] == ev[1][4], 'barrier counts differ'
        for a in ev:
            for b in ev:
                assert sorted(a[0]) == sorted(b[0])
                for key, e in a[2].items():
                    assert b[1].get(key, 1 << 30) < e, ('read too early', j, key, e, b[1].get(key))
                for key, e in a[0].items():
                    old = key[:2] + (key[2] - 1,)
                    if old in b[3]:
                        assert b[3][old] is not None and b[3][old] < e, ('refilled too early', j, key, e, b[3][old])
        for key in ev[0][0]:
            assert key in ev[0][2] or key[2] == max(k[2] for k in ev[0][0] if k[:2] == key[:2]), ('never read', key)


def late_addr():
    o = []
    A = lambda t: o.append(I(t))
    ln, t0, t1, t3 = vX, TMP, TMP + 1, TMP + 3
    A('v_and_b32 v%d, 15, v%d' % (t0, ln))
    A('v_lshrrev_b32 v%d, 4, v%d' % (t1, ln))
    A('v_mul_u32_u24 v%d, 384, v%d' % (vKA[0], t0))
    A('v_and_b32 v%d, 6, v%d' % (t3, t0))
    A('v_xor_b32 v%d, v%d, v%d' % (t3, t3, t1))
    A('v_lshl_add_u32 v%d, v%d, 4, v%d' % (vKA[0], t3, vKA[0]))
    A('v_xor_b32 v%d, 64, v%d' % (vKA[1], vKA[0]))
    for m in range(2):
        A('v_add_u32 v%d, s%d, v%d' % (vQA[m], sQOw, vKA[m]))
    A('v_lshrrev_b32 v%d, 2, v%d' % (t0, ln))
    A('v_mul_u32_u24 v%d, 384, v%d' % (vVA[0], t0))
    A('v_and_b32 v%d, 6, v%d' % (t0, t0))
    A('v_bfe_u32 v%d, v%d, 1, 1' % (t3, ln))
    A('v_xor_b32 v%d, v%d, v%d' % (t0, t0, t3))
    A('v_lshl_add_u32 v%d, v%d, 4, v%d' % (vVA[0], t0, vVA[0]))
    A('v_and_b32 v%d, 1, v%d' % (t3, ln))
    A('v_lshl_add_u32 v%d, v%d, 3, v%d' % (vVA[0], t3, vVA[0]))
    A('v_add_u32 v%d, %d, v%d' % (vVA[0], VBASE, vVA[0]))
    for m in range(1, 4):
        A('v_xor_b32 v%d, %d, v%d' % (vVA[m], 32 * m, vVA[0]))
    A('v_lshrrev_b32 v%d, 3, v%d' % (t0, ln))
    A('v_and_b32 v%d, 7, v%d' % (t1, ln))
    A('v_xor_b32 v%d, v%d, v%d' % (t3, t1, t0))
    A('v_lshl_add_u32 v%d, v%d, 7, s%d' % (vPR, t0, sQOw))
    A('v_lshl_add_u32 v%d, v%d, 4, v%d' % (vPR, t3, vPR))
    A('v_mul_u32_u24 v%d, 384, v%d' % (vOG, t0))
    A('v_lshl_add_u32 v%d, v%d, 4, v%d' % (vOG, t1, vOG))
    A('v_lshrrev_b32 v%d, 4, v%d' % (t0, ln))
    A('v_xor_b32 v%d, v%d, v%d' % (t0, t0, ln))
    A('v_bfe_u32 v%d, v%d, 1, 1' % (t0, t0))
    A('v_subrev_u32 v%d, 1, v%d' % (t0, t0))
    A('v_and_b32 v%d, 0x3f803f80, v%d' % (t0, t0))
    for i in range(4):
        A('v_accvgpr_write_b32 a%d, v%d' % (aSEL + i, t0))
    A('v_and_b32 v%d, 1, v%d' % (t0, ln))
    A('v_mul_u32_u24 v%d, 0xaaaa, v%d' % (t0, t0))
    A('v_add_u32 v%d, 0x4444, v%d' % (vIDX, t0))
    return o


def code_touch():
    o = []
    A = lambda t: o.append(I(t))
    ln, t0 = vX, TMP + 5
    A('s_getpc_b64 s[%d:%d]' % (sPC, sPC + 1))
    A('s_mul_i32 s%d, s%d, %d' % (sT0, sJ, opt.ipre * 128))
    A('s_mul_i32 s%d, s%d, %d' % (sCode, sW, opt.ipre * 32))
    A('s_add_u32 s%d, s%d, s%d' % (sCode, sCode, sT0))
    A('v_min_u32 v%d, %d, v%d' % (t0, opt.ipre - 1, ln))
    A('v_lshlrev_b32 v%d, 7, v%d' % (t0, t0))
    A('v_add_u32 v%d, s%d, v%d' % (t0, sT0, t0))
    A('v_min_u32 v%d, L_codeend-L_first-4, v%d' % (t0, t0))
    A('s_cmp_lg_u32 s%d, 0' % sW)
    A('s_cbranch_scc1 L_nopre')
    A('global_load_dword v%d, v%d, s[%d:%d]' % (O2, t0, sPC, sPC + 1))
    A('L_nopre:')
    return o


def code_refresh(t):
    n = opt.ipre // 4
    o = [I('v_mbcnt_lo_u32_b32 v%d, -1, 0' % vX), I('v_mbcnt_hi_u32_b32 v%d, -1, v%d' % (vX, vX)),
         I('v_min_u32 v%d, %d, v%d' % (vX, n - 1, vX)), I('v_lshl_add_u32 v%d, v%d, 7, s%d' % (vX, vX, sCode)),
         I('v_min_u32 v%d, L_codeend-L_first-4, v%d' % (vX, vX)),
         I('global_load_dword v%d, v%d, s[%d:%d]' % (vX, vX, sPC, sPC + 1), vm_id=('code',))]
    o[-1].notbefore = t
    o[-1].prio = -100000
    return o


def prologue(pro):
    A = lambda t, **kw: pro.append(I(t, **kw))
    A('s_cmp_ge_u32 s2, 256')
    A('s_cbranch_scc1 L_end')
    A('s_load_dwordx4 s[84:87], s[0:1], 0')
    A('s_load_dwordx4 s[88:91], s[0:1], 16')
    if opt.stamps:
        A('s_load_dwordx2 s[70:71], s[0:1], 40')
        A('s_memrealtime s[72:73]')
        A('s_memtime s[74:75]')
    ln, t0, t1, t2 = vX, TMP, TMP + 1, TMP + 2
    A('v_lshrrev_b32 v%d, 6, v0' % t0)
    A('v_and_b32 v%d, 63, v0' % ln)
    A('v_readfirstlane_b32 s%d, v%d' % (sW, t0))
    A('s_lshr_b32 s%d, s2, 3' % sJ)
    if opt.ipre and not opt.ilate:
        pro += code_touch()
    A('v_lshrrev_b32 v%d, 3, v%d' % (t0, ln))
    A('v_and_b32 v%d, 7, v%d' % (t2, ln))
    for j in range(3):
        A('v_add_u32 v%d, %d, v%d' % (t1, 8 * j, t0))
        A('v_mul_u32_u24 v%d, 43, v%d' % (t1, t1))
        A('v_lshrrev_b32 v%d, 7, v%d' % (t1, t1))
        A('v_and_b32 v%d, 6, v%d' % (t1, t1))
        A('v_xor_b32 v%d, v%d, v%d' % (t1, t1, t2))
        A('v_lshlrev_b32 v%d, 4, v%d' % (t1, t1))
        A('v_lshl_add_u32 v%d, v%d, 7, v%d' % (vD[j], t0, t1))
    A('s_mov_b32 s%d, 0x%x' % (sThr, opt.thr))
    A('s_mov_b32 s%d, 0x3dd53b95' % sC)
    A('s_mov_b32 s%d, 0' % sFlag)
    A('s_mov_b32 s%d, 1' % sBit)
    A('s_and_b32 s%d, s2, 7' % sT0)
    A('s_lshl_b32 s%d, s%d, 6' % (sHead0, sT0))
    A('s_mul_i32 s%d, s%d, 3072' % (sW3, sW))
    A('s_add_u32 s%d, s%d, %d' % (sW3V, sW3, VBASE))
    A('s_mul_i32 s%d, s%d, %d' % (sQOw, sW, QOW))
    A('s_add_u32 s%d, s%d, %d' % (sQOw, sQOw, QOBASE))
    A('s_mov_b32 s%d, 0' % sPn)
    pro += item_calc(sPn)
    A('s_add_u32 s%d, s%d, s%d' % (sOffK, sKV, sW3))
    A('s_mov_b32 s%d, s%d' % (sOffV, sOffK))
    A('s_waitcnt lgkmcnt(0)')
    for srd, p, n in ((SRD_K, 86, KBYTES), (SRD_Q, 84, QBYTES if not opt.noq else 0), (SRD_V, 88, KBYTES),
                      (SRD_O, 90, QBYTES if not opt.nost else 0)):
        A('s_mov_b32 s%d, s%d' % (srd, p))
        A('s_and_b32 s%d, s%d, 0xffff' % (srd + 1, p + 1))
        A('s_mov_b32 s%d, %d' % (srd + 2, n))
        A('s_mov_b32 s%d, 0x20000' % (srd + 3))
    if opt.stamps:
        A('s_mov_b32 s80, s70')
        A('s_and_b32 s81, s71, 0xffff')
        A('s_mov_b32 s82, 0x100000')
        A('s_mov_b32 s83, 0x20000')
    if opt.prof:
        for k in range(6):
            A('s_mov_b32 s%d, 0' % (50 + k))
        A('s_mov_b32 s94, s74')
        A('s_lshl_b32 s98, s2, 8')
        A('s_add_u32 s98, s98, 0x20000')
        A('s_lshl_b32 s99, s%d, 6' % sW)
        A('s_add_u32 s98, s98, s99')


HEADER = """; Kernarg layout (48 bytes): q, k, v, out, debug, ws
; @launch grid=(256,1,1) block=(256,1,1) lds=%d
.amdgcn_target "amdgcn-amd-amdhsa--gfx950"
.text
.globl %s
.p2align 8
.type %s,@function
%s:
"""
FOOTER = """
.section .rodata,"a"
.p2align 6
.amdhsa_kernel %s
  .amdhsa_next_free_vgpr 512
  .amdhsa_next_free_sgpr 102
  .amdhsa_accum_offset 256
  .amdhsa_group_segment_fixed_size 0
  .amdhsa_kernarg_size 48
  .amdhsa_user_sgpr_count 2
  .amdhsa_user_sgpr_kernarg_segment_ptr 1
  .amdhsa_system_sgpr_workgroup_id_x 1
.end_amdhsa_kernel
"""


def main():
    ap = argparse.ArgumentParser()
    ap.add_argument('-o', default='standalone__gqa_softmax__near_ridge.s')
    ap.add_argument('--set', action='append', default=[])
    a = ap.parse_args()
    for kv in a.set:
        k, v = kv.split('=', 1)
        cur = getattr(opt, k)
        if isinstance(cur, bool):
            v = v not in ('0', 'False', '')
        elif isinstance(cur, int):
            v = int(v, 0)
        elif isinstance(cur, float):
            v = float(v)
        setattr(opt, k, v)
    asmlib.LDS_LAT = opt.lds_lat
    asmlib.LDSW = opt.ldsw
    asmlib.LDSW2 = opt.ldsw2
    asmlib.STW = opt.stw
    asmlib.DMAD = opt.dmad
    asmlib.BAR = opt.bar
    asmlib.DMAW, asmlib.DMAV = opt.dmaw, opt.dmav
    asmlib.DENSE_M, asmlib.DENSE_W0, asmlib.DENSE_W = opt.dm, opt.dw0, opt.dw
    asmlib.LDS_Q = opt.lds_q
    asmlib.STGAP = opt.stgap
    asmlib.WAIT_LAT = opt.wait_lat
    body = build()
    if opt.short:
        body = '\n'.join(l.strip().replace(', ', ',') for l in body.split('\n'))
    txt = HEADER % (LDS_BYTES, NAME, NAME, NAME) + body + FOOTER % NAME
    open(a.o, 'w').write(txt)
    print('wrote %s (%d bytes)' % (a.o, len(txt)), file=sys.stderr)


if __name__ == '__main__':
    main()
```

```python
import re

REG_RE = re.compile(r'^(-|abs\()?([vas])(\d+)\)?$')
RANGE_RE = re.compile(r'^(-)?([vas])\[(\d+):(\d+)\]$')


def regs_of(op):
    op = op.strip()
    m = RANGE_RE.match(op)
    if m:
        return [(m.group(2), i) for i in range(int(m.group(3)), int(m.group(4)) + 1)]
    m = REG_RE.match(op)
    if m:
        return [(m.group(2), int(m.group(3)))]
    if op in ('vcc', 'exec', 'm0', 'scc'):
        return [(op, 0)]
    if op in ('vcc_lo', 'vcc_hi'):
        return [('vcc', 0)]
    if op in ('exec_lo', 'exec_hi'):
        return [('exec', 0)]
    return []


TRANS = ('v_exp_f32', 'v_rcp_f32', 'v_log_f32', 'v_rsq_f32', 'v_sqrt_f32')
SWAPS = ('v_permlane16_swap_b32', 'v_permlane32_swap_b32')
RMW = ('v_fmac_f32',)


class Inst:
    __slots__ = ('text', 'op', 'kind', 'reads', 'writes', 'tag', 'prio', 'notbefore', 'deps', 'idx', 'after',
                 'lat', 'vm_id', 'srcc', 'srcab', 'note', 'floating', 'glue')

    def __init__(self, text, tag=None, prio=0.0, notbefore=0, vm_id=None):
        self.text = text
        self.tag = tag
        self.prio = prio
        self.notbefore = notbefore
        self.vm_id = vm_id
        self.after = []
        self.srcc = set()
        self.srcab = set()
        self.floating = False
        self.note = None
        self.glue = None
        self.parse()

    def parse(self):
        t = self.text.split('\n')[0].split(';')[0].strip()
        t = re.sub(r'\s+op_sel(_hi)?:\[[01,]*\]', '', t)
        t = re.sub(r'\s+offset[01]:\d+', '', t)
        parts = t.split(None, 1)
        op = parts[0]
        self.op = op
        rest = parts[1] if len(parts) > 1 else ''
        ops = [x.strip() for x in rest.split(',')] if rest else []
        last_mods = ''
        if ops:
            sp = ops[-1].split(None, 1)
            if op.startswith('s_waitcnt') or op.startswith('s_nop') or op.startswith('s_cbranch') or op.startswith('s_branch') or op == 's_call_b64':
                pass
            elif len(sp) > 1:
                ops[-1] = sp[0]
                last_mods = sp[1]
        R = set()
        W = set()
        base = op.replace('_e32', '').replace('_e64', '').replace('_dpp', '')
        if op.endswith(':'):
            self.kind = 'label'
        elif op.startswith('v_mfma'):
            self.kind = 'mfma'
            W |= set(regs_of(ops[0]))
            self.srcab = set(regs_of(ops[1])) | set(regs_of(ops[2]))
            self.srcc = set(regs_of(ops[3]))
            R |= self.srcab | self.srcc
        elif op.startswith('v_smfmac'):
            self.kind = 'mfma'
            W |= set(regs_of(ops[0]))
            self.srcab = set(regs_of(ops[1])) | set(regs_of(ops[2])) | set(regs_of(ops[3]))
            self.srcc = set(regs_of(ops[0]))
            R |= self.srcab | self.srcc
        elif op.startswith('ds_read'):
            self.kind = 'ds'
            W |= set(regs_of(ops[0]))
            R |= set(regs_of(ops[1]))
        elif op.startswith('ds_write'):
            self.kind = 'ds'
            for o in ops:
                R |= set(regs_of(o))
        elif op.startswith('buffer_load'):
            mods = last_mods.split()
            if 'lds' in mods:
                self.kind = 'dma'
                for o in ops:
                    R |= set(regs_of(o))
                R.add(('m0', 0))
            else:
                self.kind = 'vld'
                W |= set(regs_of(ops[0]))
                for o in ops[1:]:
                    R |= set(regs_of(o))
        elif op.startswith('global_load'):
            self.kind = 'vld'
            W |= set(regs_of(ops[0]))
            for o in ops[1:]:
                R |= set(regs_of(o))
        elif op.startswith('buffer_store'):
            self.kind = 'vst'
            ops = [o for o in ops if o != 'off']
            for o in ops:
                R |= set(regs_of(o))
        elif op.startswith('v_cmp'):
            self.kind = 'valu'
            W |= set(regs_of(ops[0]))
            for o in ops[1:]:
                R |= set(regs_of(o))
        elif base in SWAPS:
            self.kind = 'valu'
            for o in ops[:2]:
                R |= set(regs_of(o))
                W |= set(regs_of(o))
        elif op.startswith('v_readfirstlane') or op.startswith('v_readlane'):
            self.kind = 'valu'
            W |= set(regs_of(ops[0]))
            for o in ops[1:]:
                R |= set(regs_of(o))
        elif op.startswith('v_'):
            self.kind = 'trans' if base in TRANS else 'valu'
            W |= set(regs_of(ops[0]))
            start = 1
            if base in ('v_add_co_u32', 'v_addc_co_u32', 'v_sub_co_u32'):
                W |= set(regs_of(ops[1]))
                start = 2
            for o in ops[start:]:
                R |= set(regs_of(o))
            if base in RMW or 'DPPMERGE' in self.text:
                R |= set(regs_of(ops[0]))
            if base == 'v_cndmask_b32' and len(ops) == 3:
                R.add(('vcc', 0))
        elif op == 's_waitcnt':
            self.kind = 'wait'
        elif op == 's_nop':
            self.kind = 'nop'
        elif op == 's_barrier':
            self.kind = 'barrier'
        elif op.startswith('s_cbranch') or op in ('s_branch', 's_call_b64', 's_setpc_b64'):
            self.kind = 'branch'
            if 'vcc' in op:
                R.add(('vcc', 0))
            if 'scc' in op:
                R.add(('scc', 0))
            if 'exec' in op:
                R.add(('exec', 0))
        elif op == 's_endpgm' or op == 's_setprio' or op == 's_sleep':
            self.kind = 'misc'
        elif op.startswith('s_load') or op.startswith('s_memtime') or op.startswith('s_memrealtime'):
            self.kind = 'smem'
            W |= set(regs_of(ops[0]))
            for o in ops[1:]:
                R |= set(regs_of(o))
        elif op.startswith('s_cmp') or op.startswith('s_bitcmp'):
            self.kind = 'salu'
            for o in ops:
                R |= set(regs_of(o))
            W.add(('scc', 0))
        elif op.startswith('s_'):
            self.kind = 'salu'
            W |= set(regs_of(ops[0]))
            for o in ops[1:]:
                R |= set(regs_of(o))
            if base in ('s_add_u32', 's_sub_u32', 's_addc_u32', 's_subb_u32', 's_and_b32', 's_or_b32', 's_xor_b32',
                        's_lshl_b32', 's_lshr_b32', 's_and_b64', 's_or_b64', 's_add_i32', 's_sub_i32', 's_min_u32',
                        's_max_u32', 's_and_saveexec_b64', 's_andn2_b64', 's_addk_i32'):
                W.add(('scc', 0))
            if base in ('s_addc_u32', 's_subb_u32', 's_cselect_b32', 's_cselect_b64'):
                R.add(('scc', 0))
            if base == 's_addk_i32':
                R |= set(regs_of(ops[0]))
            if base == 's_and_saveexec_b64':
                W.add(('exec', 0))
                R.add(('exec', 0))
        elif op.startswith('.'):
            self.kind = 'directive'
        else:
            raise ValueError('unknown instruction: ' + self.text)
        self.reads = R
        self.writes = W

    def __repr__(self):
        return self.text


VEC_VALU = ('valu', 'trans', 'mfma')
MEM = ('ds', 'dma', 'vld', 'vst')
SCALAR = ('salu', 'wait', 'nop', 'barrier', 'branch', 'misc', 'smem')


def is_vreg(r):
    return r[0] in ('v', 'a')


def need_states(p, c):
    n = 0
    if p.kind == 'mfma':
        d = p.writes
        if c.kind == 'mfma':
            if c.srcab & d:
                n = max(n, 8)
            if c.srcc & d:
                if c.srcc != d:
                    n = max(n, 6)
            if (c.writes & d) and c.writes != d:
                n = max(n, 6)
        elif c.kind in ('valu', 'trans'):
            if (c.reads & d) or (c.writes & d):
                n = max(n, 8)
            if c.writes & p.srcc:
                n = max(n, 3)
        elif c.kind in MEM:
            if (c.reads & d) or (c.writes & d):
                n = max(n, 8)
    elif p.kind in ('valu', 'trans'):
        vw = {r for r in p.writes if is_vreg(r)}
        sw = p.writes - vw
        if c.kind == 'mfma' and (c.reads & vw):
            n = max(n, 2)
        if p.kind == 'trans' and c.kind in ('valu', 'trans', 'mfma') + MEM and (c.reads & vw):
            n = max(n, 1)
        if 'op_sel' in p.text and c.kind in ('valu', 'trans', 'mfma') + MEM and ((c.reads | c.writes) & vw):
            n = max(n, 1)
        if p.op.startswith('v_pk_') and c.kind == 'mfma':
            n = max(n, 2)
        cb = c.op.replace('_e32', '')
        if cb in SWAPS and (c.reads & vw):
            n = max(n, 2)
        if (c.op.startswith('v_readfirstlane') or c.op.startswith('v_readlane')) and (c.reads & vw):
            n = max(n, 1)
        if 'row_' in c.text and (c.reads & vw):
            n = max(n, 2)
        if sw:
            if c.kind in ('valu', 'trans') and (c.reads & sw):
                n = max(n, 2)
            if c.kind in ('dma', 'vld', 'vst') and (c.reads & sw):
                n = max(n, 5)
            if c.kind == 'branch' and (c.reads & sw):
                n = max(n, 5)
            if c.kind == 'salu' and (c.reads & sw):
                n = max(n, 4)
    elif p.kind == 'vst':
        if p.op.endswith('x4') or p.op.endswith('x3'):
            data = {r for r in p.reads if is_vreg(r)}
            if c.kind in ('valu', 'trans') and (c.writes & data):
                n = max(n, 2)
            elif c.writes & data:
                n = max(n, 1)
    elif p.kind == 'salu':
        if ('m0', 0) in p.writes and c.kind == 'dma':
            n = max(n, 1)
    return n


def states_of(i):
    if i.kind == 'nop':
        return int(i.text.split()[1]) + 1
    if i.kind in ('label', 'directive'):
        return 0
    return 1


MAX_STATES = 8


def check_hazards(seq, name=''):
    bad = []
    for j, c in enumerate(seq):
        if c.kind in ('label', 'directive', 'wait', 'nop', 'barrier'):
            continue
        dist = 0
        k = j - 1
        while k >= 0 and dist < MAX_STATES:
            p = seq[k]
            n = need_states(p, c)
            if n > dist:
                bad.append((name, k, p.text, j, c.text, n, dist))
            dist += states_of(p)
            k -= 1
    return bad


def fix_hazards(seq, history=()):
    out = []
    hist = list(history)[-24:]
    for c in seq:
        if c.kind not in ('label', 'directive', 'wait', 'nop', 'barrier'):
            ctx = hist + out[-24:]
            dist = 0
            need = 0
            k = len(ctx) - 1
            while k >= 0 and dist < MAX_STATES:
                n = need_states(ctx[k], c)
                need = max(need, n - dist)
                dist += states_of(ctx[k])
                k -= 1
            if need > 0:
                out.append(Inst('s_nop %d' % (need - 1)))
        out.append(c)
    return out


LDS_LAT = 160
LDSW = 12
LDSW2 = 12
STW = 0
DMAD = 12
DMAW = 0
DMAV = 0
BAR = 16
LDS_OCC = 0
LDS_Q = 0
STGAP = 120
WAIT_LAT = 160


def issue_time(prev_kind, prev_t, c, st):
    t = st['slot']
    k = c.kind
    if k in VEC_VALU:
        t = max(t, st['vec_free'])
        if c.op.startswith('v_pk_'):
            t = max(t, st['mfma_free'] + 12)
        if k == 'mfma':
            t = max(t, st['mfma_free'], st['mfma_lock'])
    elif k in MEM:
        t = max(t, st['vec_free'])
        if k == 'ds':
            t = max(t, st['ww_free'] if c.op.startswith('ds_write') else st['wr_free'])
            if LDS_OCC:
                t = max(t, st['lds_busy'] - LDS_Q)
        else:
            t = max(t, st['salu_t'] + 8)
            if not (k == 'dma' and st['last_kind'] == 'vst' and t == st['slot']):
                t = max(t, st['wv_free'])
        if k == 'vst':
            t = max(t, st['st_free'])
        if st['last_valu_end'] is not None:
            t = max(t, st['last_valu_end'] + 8)
    return t


def commit(c, t, st):
    k = c.kind
    dur = 4 * states_of(c) if k == 'nop' else BAR if k == 'barrier' else 4
    st['last_kind'] = k
    if k == 'mfma':
        st['vec_by_mfma'] = True
    elif k not in SCALAR:
        st['vec_by_mfma'] = False
    if k == 'mfma':
        st['vec_free'] = t + (12 if c.op.startswith('v_smfmac') else 8)
        st['mfma_free'] = t + 16
    elif k == 'salu':
        st['salu_t'] = t
    elif k == 'valu' or k == 'trans':
        dur = 8 if k == 'trans' or c.op.replace('_e32', '') in SWAPS else 4
        st['vec_free'] = t + dur
        st['last_valu_end'] = t + dur
    elif k == 'ds':
        if c.op.startswith('ds_write'):
            one = c.op in ('ds_write_b64', 'ds_write2_b32', 'ds_write_b32')
            dur = 12 if one else 20
            st['ww_free'] = t + (LDSW2 // 2 if one else LDSW2)
            st['wr_free'] = t + (LDSW // 2 if one else LDSW)
            st['wv_free'] = max(st['wv_free'], st['wr_free'])
        if LDS_OCC:
            st['lds_busy'] = max(st['lds_busy'], t) + LDS_OCC * (4 if c.op.endswith('b128') else 8 if 'write2' in c.op else 4 if 'write' in c.op else 2)
        st['vec_free'] = t + dur
    elif k == 'vst':
        dur = 8
        st['st_free'] = t + STGAP
        st['wv_free'] = max(st['wv_free'], t + STW)
        st['ww_free'] = max(st['ww_free'], t + (STWW or STW))
        st['mfma_lock'] = t + 20
        st['vec_free'] = t + 8
    elif k in MEM:
        dur = DMAD
        st['vec_free'] = t + dur
        st['ww_free'] = max(st['ww_free'], t + DMAW)
        st['wv_free'] = max(st['wv_free'], t + DMAV)
    st['slot'] = t + dur


def new_state():
    return dict(slot=0, vec_free=0, mfma_free=-100, last_valu_end=None, last_kind=None, vec_by_mfma=False, ww_free=0, wr_free=0,
                wv_free=0, st_free=0, lds_busy=0, mfma_lock=0, salu_t=-100)


def estimate(seq):
    st = new_state()
    t = 0
    for c in seq:
        if c.kind in ('label', 'directive'):
            continue
        t = issue_time(None, None, c, st)
        commit(c, t, st)
    return max(st['slot'], st['mfma_free'])


def build_deps(prog):
    last_w = {}
    readers = {}
    for i, c in enumerate(prog):
        c.idx = i
    for i, c in enumerate(prog):
        deps = {}

        def add(j, lat):
            deps[j] = max(deps.get(j, 0), lat)
        for r in c.reads:
            if r in last_w:
                p = prog[last_w[r]]
                lat = 4
                if p.kind == 'mfma':
                    lat = 16 if (c.kind == 'mfma' and r in c.srcc and c.srcc == p.writes) else 40
                elif p.kind == 'ds':
                    lat = LDS_LAT
                elif p.kind == 'trans':
                    lat = 12
                elif p.kind == 'valu' and c.kind == 'mfma':
                    lat = 12
                add(last_w[r], lat)
        for r in c.writes:
            if r in last_w:
                p = prog[last_w[r]]
                add(last_w[r], 40 if (p.kind == 'mfma' and c.kind != 'mfma') else 4)
            for j in readers.get(r, ()):
                p = prog[j]
                add(j, 16 if (p.kind == 'mfma' and r in p.srcc and c.kind != 'mfma') else 4)
        for a in c.after:
            add(a.idx, 4)
        for r in c.reads:
            readers.setdefault(r, []).append(i)
        for r in c.writes:
            last_w[r] = i
            readers[r] = []
        deps.pop(i, None)
        c.deps = deps


def schedule(prog, history=(), ds_chain=False, verbose=False, urgent_ok=True, jitter=None):
    lastm = lastds = lastvm = lastst = None
    for c in prog:
        if c.kind == 'mfma':
            if c.floating:
                continue
            if lastm is not None:
                c.after.append(lastm)
            lastm = c
        elif c.kind == 'ds' and ds_chain:
            if lastds is not None:
                c.after.append(lastds)
            lastds = c
        elif c.kind in ('dma', 'vld'):
            if lastvm is not None:
                c.after.append(lastvm)
            lastvm = c
        elif c.kind == 'vst':
            if lastst is not None:
                c.after.append(lastst)
            lastst = c
    build_deps(prog)
    n = len(prog)
    succ = [[] for _ in range(n)]
    for c in prog:
        for j, lat in c.deps.items():
            succ[j].append((c.idx, lat))
    def dur(c):
        if c.kind == 'mfma':
            return 16
        if c.kind == 'trans' or c.op.replace('_e32', '') in SWAPS:
            return 8
        return 4
    nm = sum(1 for c in prog if c.kind == 'mfma')
    tail = [0] * n
    for c in reversed(prog):
        best = dur(c)
        for (s, lat) in succ[c.idx]:
            l = lat
            if c.kind == 'mfma' and prog[s].kind == 'mfma':
                l = max(l, 16)
            best = max(best, l + tail[s])
        tail[c.idx] = best
    horizon = max(tail) if tail else 0
    latest = [horizon - tail[i] for i in range(n)]
    if jitter is not None:
        rng, amp = jitter
        cls = {k: rng.uniform(-amp, amp) for k in ('valu', 'trans', 'ds')}
        latest = [latest[i] + cls.get(prog[i].kind, 0) + rng.uniform(-amp, amp) * 0.5 for i in range(n)]
    done_t = [None] * n
    mlist = [c for c in prog if c.kind == 'mfma' and not c.floating]
    remaining = set(range(n))
    npred = [len(c.deps) for c in prog]
    ready = [i for i in range(n) if npred[i] == 0]
    st = new_state()
    out = []
    ctx = list(history)[-24:]

    def states_ok(c):
        dist = 0
        need = 0
        seq = ctx
        k = len(seq) - 1
        while k >= 0 and dist < MAX_STATES:
            nn = need_states(seq[k], c)
            need = max(need, nn - dist)
            dist += states_of(seq[k])
            k -= 1
        return need

    def ready_time(c):
        t = c.notbefore
        for j, lat in c.deps.items():
            t = max(t, done_t[j] + lat)
        return t

    glued = {id(c.glue): c for c in prog if c.glue is not None}
    while remaining:
        cands = []
        for i in ready:
            c = prog[i]
            g = glued.get(id(c))
            if g is not None and npred[g.idx] > 1:
                continue
            t0 = issue_time(None, None, c, st)
            t = max(t0, ready_time(c))
            cands.append((i, c, t, states_ok(c)))
        if out and id(out[-1]) in glued:
            g = glued[id(out[-1])]
            cands = [(g.idx, g, issue_time(None, None, g, st), 0)]
        mf = [x for x in cands if x[1].kind == 'mfma']
        now = st['slot']
        fl = [x for x in mf if x[1].floating and x[3] == 0 and x[2] <= max(st['mfma_free'], st['vec_free'], now)]
        ch = [x for x in mf if not x[1].floating]
        if fl:
            mf = fl[:1]
        elif ch:
            mf = ch[:1]
        else:
            mf = sorted(mf, key=lambda x: (x[3], x[2]))[:1]
        pick = None
        if mf:
            i, c, tm, need = mf[0]
            if need == 0:
                best = None
                after_mfma = st['last_kind'] == 'mfma'
                for (j, d, t, nd) in cands:
                    if d.kind == 'mfma' or nd > 0:
                        continue
                    scal = d.kind in SCALAR
                    if scal and after_mfma and t <= now:
                        key = (-1, latest[j] + d.prio, t, j)
                        if best is None or key < best[0]:
                            best = (key, (j, d, t, nd))
                        continue
                    if scal and not after_mfma and (latest[j] + d.prio > now + 64 or d.kind in ('wait', 'barrier')):
                        continue
                    if t > tm - 4 and t > now + 12:
                        continue
                    if d.kind in ('dma', 'vld', 'vst') or d.op.startswith('ds_write'):
                        if st['vec_by_mfma'] and ready_time(d) <= now + 8:
                            key = (-0.5, latest[j] + d.prio, t, j)
                            if best is None or key < best[0]:
                                best = (key, (j, d, t, nd))
                            continue
                        if not now > ready_time(d) + 160:
                            continue
                    st2 = dict(st)
                    commit(d, t, st2)
                    tm2 = max(issue_time(None, None, c, st2), ready_time(c))
                    delay = tm2 - tm
                    urgent = latest[j] + d.prio < tm - 16 * URGENT and (urgent_ok or d.prio <= -40000)
                    if delay <= 0 or (urgent and delay <= 12):
                        key = (0 if delay <= 0 else 1, latest[j] + d.prio, t, j)
                        if best is None or key < best[0]:
                            best = (key, (j, d, t, nd))
                pick = best[1] if best else mf[0]
                if FILL_LOOKAHEAD and best and st['vec_by_mfma'] and pick[1].kind in ('valu', 'ds') and pick[1].op.replace('_e32', '') not in SWAPS:
                    def second_exists(first):
                        st2 = dict(st)
                        commit(first[1], first[2], st2)
                        for (j2, d2, t2, nd2) in cands:
                            if d2.kind not in ('valu', 'ds') or nd2 > 0 or j2 == first[0]:
                                continue
                            t3 = max(issue_time(None, None, d2, st2), ready_time(d2))
                            st3 = dict(st2)
                            commit(d2, t3, st3)
                            if max(issue_time(None, None, c, st3), ready_time(c)) - tm <= 0:
                                return True
                        for (sx, lat) in succ[first[0]]:
                            d2 = prog[sx]
                            if npred[sx] == 1 and d2.kind == 'valu' and lat <= 4:
                                return True
                        return False
                    if not second_exists(pick) and latest[pick[0]] + pick[1].prio > now + FILL_SLACK:
                        alts = []
                        for x in cands:
                            j, d, t, nd = x
                            if nd > 0 or j == pick[0] or d.kind not in ('trans', 'valu', 'ds'):
                                continue
                            st2 = dict(st)
                            commit(d, t, st2)
                            if max(issue_time(None, None, c, st2), ready_time(c)) - tm > 0:
                                continue
                            if d.kind == 'trans' or second_exists(x):
                                alts.append((latest[j] + d.prio, j, x))
                        if alts:
                            pick = min(alts)[2]
            else:
                others = [x for x in cands if x[1].kind != 'mfma' and x[3] == 0]
                if others:
                    pick = min(others, key=lambda x: (x[2] > now + 8, latest[x[0]] + x[1].prio, x[2], x[0]))
                else:
                    nop = Inst('s_nop %d' % (need - 1))
                    t = st['slot']
                    commit(nop, t, st)
                    out.append(nop)
                    ctx.append(nop)
                    continue
        else:
            ok = [x for x in cands if x[3] == 0]
            if ok:
                nxt = next((m for m in mlist if done_t[m.idx] is None), None)
                anc = None
                if nxt is not None:
                    seen = set()
                    stack = [nxt.idx]
                    while stack:
                        z = stack.pop()
                        for j in prog[z].deps:
                            if done_t[j] is None and j not in seen:
                                seen.add(j)
                                stack.append(j)
                    anc = [x for x in ok if x[0] in seen]
                tmin = min(x[2] for x in ok)
                if anc and min(x[2] for x in anc) <= tmin + 64:
                    tm2 = min(x[2] for x in anc)
                    near = [x for x in anc if x[2] <= tm2 + 4]
                else:
                    near = [x for x in ok if x[2] <= tmin + 4]
                pick = min(near, key=lambda x: (latest[x[0]] + x[1].prio, x[2], x[0]))
            else:
                need = min(x[3] for x in cands)
                nop = Inst('s_nop %d' % (need - 1))
                commit(nop, st['slot'], st)
                out.append(nop)
                ctx.append(nop)
                continue
        i, c, t, nd = pick
        commit(c, t, st)
        done_t[i] = t
        out.append(c)
        ctx.append(c)
        if len(ctx) > 48:
            del ctx[:24]
        remaining.discard(i)
        ready.remove(i)
        for (s, lat) in succ[i]:
            npred[s] -= 1
            if npred[s] == 0:
                ready.append(s)
    if verbose:
        print('scheduled %d instrs, %d mfma, est %d cycles (mfma bound %d)' % (n, nm, max(st['slot'], st['mfma_free']), nm * 16))
    return out


URGENT = 1
FILL_LOOKAHEAD = False
FILL_SLACK = 24


def insert_lgkm_waits(seq, pending=(), slack=None):
    q = list(pending)
    age = {id(x): -48 * (len(q) - i) // 2 - 32 for i, x in enumerate(q)}
    out = []
    st = new_state()
    for c in seq:
        if c.kind in ('label', 'directive'):
            out.append(c)
            continue
        if c.kind == 'wait':
            m = re.search(r'lgkmcnt\((\d+)\)', c.text)
            if m:
                k = int(m.group(1))
                if len(q) > k:
                    q = q[len(q) - k:] if k else []
            out.append(c)
            commit(c, issue_time(None, None, c, st), st)
            continue
        need = -1
        for pos, d in enumerate(q):
            if d.op.startswith('ds_read'):
                if (c.reads & d.writes) or (c.writes & d.writes):
                    need = pos
            else:
                dr = {r for r in d.reads if is_vreg(r)}
            if isinstance(c.tag, dict) and d in c.tag.get('lds_after', ()):
                need = pos
        t = issue_time(None, None, c, st)
        if need >= 0:
            pos = need
            while pos + 1 < len(q) and t - age[id(q[pos + 1])] >= WAIT_LAT:
                pos += 1
            nleft = len(q) - pos - 1
            if nleft > 15:
                pos += nleft - 15
                nleft = 15
            w = Inst('s_waitcnt lgkmcnt(%d)' % nleft)
            k = len(out)
            nds = 0
            while k > 0 and out[k - 1].kind in ('valu', 'trans', 'ds') and len(out) - k < 3:
                if out[k - 1].kind == 'ds':
                    nds += 1
                k -= 1
            hoist = k > 0 and k < len(out) and out[k - 1].kind == 'mfma' and nds <= nleft
            if hoist and nds:
                young = [x for x in out[k:] if x.kind == 'ds']
                hoist = all(any(x is y for y in q[pos + 1:]) for x in young)
            if hoist:
                w = Inst('s_waitcnt lgkmcnt(%d)' % (nleft - nds))
                out.insert(k, w)
            else:
                out.append(w)
            commit(w, issue_time(None, None, w, st), st)
            q = q[pos + 1:]
            t = issue_time(None, None, c, st)
        commit(c, t, st)
        out.append(c)
        if c.kind == 'ds':
            q.append(c)
            age[id(c)] = t
    return out, q


def text_of(seq):
    lines = []
    for c in seq:
        if c.kind == 'label':
            lines.append(c.text)
        else:
            lines.append('    ' + c.text)
    return '\n'.join(lines)


def verify_lgkm(seq, name=''):
    q = []
    bad = []
    for c in seq:
        if c.kind in ('label', 'directive'):
            continue
        if c.kind == 'wait':
            m = re.search(r'lgkmcnt\((\d+)\)', c.text)
            if m:
                k = int(m.group(1))
                if len(q) > k:
                    q = q[len(q) - k:] if k else []
            continue
        for d in q:
            if d.op.startswith('ds_read') and ((c.reads & d.writes) or (c.writes & d.writes)):
                bad.append((name, d.text, c.text))
        if c.kind == 'ds' or c.kind == 'smem':
            q.append(c)
    return bad


def schedule_dense(prog, history=(), verbose=False, jitter=None):
    lastm = lastvm = lastst = None
    for c in prog:
        if c.kind == 'mfma' and not c.floating:
            if lastm is not None:
                c.after.append(lastm)
            lastm = c
        elif c.kind in ('dma', 'vld'):
            if lastvm is not None:
                c.after.append(lastvm)
            lastvm = c
        elif c.kind == 'vst':
            if lastst is not None:
                c.after.append(lastst)
            lastst = c
    build_deps(prog)
    n = len(prog)
    succ = [[] for _ in range(n)]
    for c in prog:
        for j, lat in c.deps.items():
            succ[j].append((c.idx, lat))
    tail = [0] * n
    cnt = [len(c.deps) for c in prog]
    topo = [i for i in range(n) if cnt[i] == 0]
    for i in topo:
        for (s, lat) in succ[i]:
            cnt[s] -= 1
            if cnt[s] == 0:
                topo.append(s)
    if len(topo) != n:
        i = next(i for i in range(n) if cnt[i])
        seen = []
        while i not in seen:
            seen.append(i)
            i = next(j for j in prog[i].deps if cnt[j])
        raise AssertionError('cycle among the ordering edges:\n' + '\n'.join(prog[j].text for j in seen[seen.index(i):]))
    for c in (prog[i] for i in reversed(topo)):
        best = 16 if c.kind == 'mfma' else 8 if c.kind == 'trans' else 4
        for (s, lat) in succ[c.idx]:
            l = max(lat, 16) if c.kind == 'mfma' and prog[s].kind == 'mfma' else lat
            best = max(best, l + tail[s])
        tail[c.idx] = best
    horizon = max(tail) if tail else 0
    key = [horizon - tail[i] + prog[i].prio for i in range(n)]
    if jitter is not None:
        rng, amp = jitter
        key = [k + rng.uniform(-amp, amp) for k in key]
    done_t = [None] * n
    npred = [len(c.deps) for c in prog]
    ready = [i for i in range(n) if npred[i] == 0]
    st = new_state()
    out = []
    ctx = list(history)[-24:]

    def states_ok(c):
        dist = need = 0
        k = len(ctx) - 1
        while k >= 0 and dist < MAX_STATES:
            need = max(need, need_states(ctx[k], c) - dist)
            dist += states_of(ctx[k])
            k -= 1
        return need
    left = n
    since = {}
    while left:
        cands = []
        for i in ready:
            c = prog[i]
            t = c.notbefore
            for j, lat in c.deps.items():
                t = max(t, done_t[j] + lat)
            cands.append((i, c, max(t, issue_time(None, None, c, st))))
        now = st['slot']
        port = max(now, st['vec_free'])
        pick = None
        sc = [x for x in cands if x[1].kind in SCALAR and x[2] <= now]
        vec = sorted((x for x in cands if x[1].kind not in SCALAR), key=lambda x: x[2])
        if sc and now + 4 <= port:
            ok = [x for x in sorted(sc, key=lambda x: key[x[0]]) if states_ok(x[1]) == 0]
            if ok:
                pick = ok[0]
        if pick is None:
            ok = [x for x in sc if x[1].prio <= -100000 and states_ok(x[1]) == 0]
            if ok:
                pick = min(ok, key=lambda x: key[x[0]])
        if pick is None and CLUSTER and st['last_kind'] in ('dma', 'vst'):
            same = [x for x in vec if x[1].kind == st['last_kind'] and x[2] <= port + 4 and states_ok(x[1]) == 0]
            if same:
                pick = min(same, key=lambda x: key[x[0]])
        if pick is None and st['last_kind'] not in ('mfma',):
            tm = min([x[2] for x in vec if x[1].kind == 'mfma'] + [1 << 30])
            mem = [x for x in vec if x[1].kind in MEM and port < x[2] <= port + 8 and states_ok(x[1]) == 0]
            for x in mem:
                since.setdefault(x[0], port)
            mem = [x for x in mem if (tm > port + DENSE_M and port - since[x[0]] >= (DENSE_R if x[1].op.startswith('ds_read') else DENSE_W0))
                   or port - since[x[0]] >= max(DENSE_W, DENSE_R if x[1].op.startswith('ds_read') else 0)]
            if mem:
                pick = min(mem, key=lambda x: key[x[0]])
        if pick is None:
            ok = []
            for x in vec:
                if ok and x[2] > ok[0][2]:
                    break
                if states_ok(x[1]) == 0:
                    ok.append(x)
            late = [x for x in cands if x[1].kind in SCALAR and states_ok(x[1]) == 0]
            if ok and late:
                m = min(late, key=lambda x: (max(x[2], now), key[x[0]]))
                if max(m[2], now) + 4 <= ok[0][2]:
                    pick = m
            if pick is None and ok:
                def rank(x):
                    c = x[1]
                    if c.kind == 'mfma':
                        return (0, 0 if c.floating else 1, key[x[0]])
                    if c.kind in MEM:
                        return (1, 0, key[x[0]])
                    if c.op.startswith('v_pk_'):
                        return (2, 0, key[x[0]])
                    return (3, 0, key[x[0]])
                pick = min(ok, key=rank)
            elif pick is None and late:
                pick = min(late, key=lambda x: (x[2], key[x[0]]))
        if pick is None:
            need = min(states_ok(x[1]) for x in cands)
            nop = Inst('s_nop %d' % (need - 1))
            commit(nop, now, st)
            out.append(nop)
            ctx.append(nop)
            continue
        i, c, t = pick
        commit(c, t, st)
        done_t[i] = t
        out.append(c)
        ctx.append(c)
        if len(ctx) > 48:
            del ctx[:24]
        left -= 1
        ready.remove(i)
        for (s, lat) in succ[i]:
            npred[s] -= 1
            if npred[s] == 0:
                ready.append(s)
    if verbose:
        nm = sum(1 for c in prog if c.kind == 'mfma')
        print('dense %d instrs, %d mfma, est %d cycles, port %d' % (n, nm, max(st['slot'], st['mfma_free']), port_time(prog)))
    return out


CLUSTER = False
STWW = 0
DENSE_M = 24
DENSE_W0 = 24
DENSE_R = 0
DENSE_W = 80


def port_time(seq):
    t = 0
    for c in seq:
        if c.kind == 'mfma' or c.kind == 'trans' or c.op.replace('_e32', '') in SWAPS:
            t += 8
        elif c.kind == 'valu':
            t += 4
        elif c.kind == 'ds':
            t += 4 if c.op.startswith('ds_read') else 12 if c.op == 'ds_write_b64' else 20
        elif c.kind in MEM:
            t += 12
    return t


def merge_waits(seq):
    out = []
    for c in seq:
        if c.kind == 'barrier' and out and out[-1].kind == 'wait' and re.fullmatch(r's_waitcnt lgkmcnt\(\d+\)', out[-1].text):
            n = int(re.search(r'\((\d+)\)', out[-1].text).group(1))
            k = len(out) - 2
            while k >= 0 and k >= len(out) - 8 and not (out[k].kind == 'wait' and isinstance(out[k].tag, dict)):
                if out[k].kind == 'ds':
                    n -= 1
                k -= 1
            if k >= 0 and n >= 0 and out[k].kind == 'wait' and isinstance(out[k].tag, dict):
                out[k].tag['lgkm'] = n
                out[k].text += ' lgkmcnt(%d)' % n
                out.pop()
        out.append(c)
    return out


FLEX = ('v_exp_f32', 'v_rcp_f32', 'v_mov_b32', 'v_max_f32', 'v_mul_f32', 'v_add_u32', 'v_sub_u32', 'v_subrev_u32', 'v_xor_b32',
        'v_and_b32', 'v_lshlrev_b32', 'v_lshrrev_b32', 'v_add_f32', 'v_permlane16_swap_b32', 'v_permlane32_swap_b32',
        'v_cmp_ngt_f32', 'v_mul_u32_u24')
_SIZE = {}


def sizes(seq):
    import subprocess
    import tempfile
    todo = sorted({c.text for c in seq if c.kind not in ('label', 'directive', 'branch') and c.text not in _SIZE})
    if todo:
        with tempfile.NamedTemporaryFile('w', suffix='.s') as f:
            f.write('\n'.join(todo) + '\n')
            f.flush()
            r = subprocess.run(['llvm-mc', '-triple=amdgcn-amd-amdhsa', '-mcpu=gfx950', '-show-encoding', f.name],
                               capture_output=True, text=True)
        enc = re.findall(r'encoding: \[([^\]]*)\]', r.stdout)
        assert len(enc) == len(todo), r.stderr[:2000]
        for t, e in zip(todo, enc):
            _SIZE[t] = len(e.split(','))
    return [0 if c.kind in ('label', 'directive') else 4 if c.kind == 'branch' else _SIZE[c.text] for c in seq]


def align8(seq, verbose=''):
    sz = sizes(seq)
    INF = 1e9
    cost = [0.0, INF]
    back = []
    before = 0
    par = 0
    for i, c in enumerate(seq):
        before += par if sz[i] == 8 else 0
        par = 0 if c.kind == 'directive' else (par + sz[i] // 4) & 1
        nxt = [INF, INF]
        how = [None, None]

        def opt_(p0, p1, extra, act):
            if cost[p0] + extra < nxt[p1]:
                nxt[p1] = cost[p0] + extra
                how[p1] = (p0, act)
        prev = seq[i - 1] if i else None
        free = prev is not None and prev.kind == 'mfma' and c.kind in ('valu', 'trans', 'ds', 'mfma')
        for p in (0, 1):
            if cost[p] >= INF:
                continue
            for pad, pc in ((0, 0.0), (1, 0.05 if free else 4.0)):
                if pad and c.kind in ('label', 'directive'):
                    continue
                q = p ^ pad
                if c.kind == 'directive':
                    opt_(p, 0, 0, (0, None))
                elif sz[i] == 4 and c.op in FLEX:
                    opt_(p, q ^ 1, pc, (pad, None))
                    opt_(p, q, pc + q + 0.001, (pad, 'e64'))
                elif sz[i] == 8:
                    opt_(p, q, pc + q, (pad, None))
                else:
                    opt_(p, q ^ (sz[i] // 4 & 1), pc, (pad, None))
        back.append(how)
        cost = nxt
    p = 0 if cost[0] <= cost[1] else 1
    total = cost[p]
    acts = []
    for how in reversed(back):
        p, act = how[p]
        acts.append(act)
    out = []
    npad = 0
    for c, (pad, enc) in zip(seq, reversed(acts)):
        if pad:
            out.append(Inst('s_nop 0'))
            npad += 1
        if enc:
            c.text = c.text.replace(c.op, c.op + '_e64', 1)
        out.append(c)
    if verbose:
        import sys
        print('align %s: %d misplaced before, cost %.0f after, %d pads' % (verbose, before, total, npad), file=sys.stderr)
    return out
```

```python
import argparse
import re
import sys

import asmlib
from asmlib import (Inst, schedule, schedule_dense, insert_lgkm_waits, fix_hazards, check_hazards, verify_lgkm, estimate, text_of,
                    merge_waits, align8)

NAME = 'standalone__gqa_softmax__near_ridge_kernel'
SQ, SK, D = 848, 512, 192
QHEAD = SQ * D * 2
KHEAD = SK * D * 2
TILE = 32 * D * 2
VBASE = 3 * TILE
QOBASE = 6 * TILE
QOW = 22528
STG = 18432
LDS_BYTES = QOBASE + 4 * QOW
QBYTES = 512 * QHEAD
KBYTES = 512 * KHEAD
NPASS = 6
assert LDS_BYTES == 163840

sW = 3
SRD_K, SRD_V, SRD_Q, SRD_O = 4, 8, 12, 16
sOffK, sOffV = 20, 21
sW3, sW3V, sQOw = 22, 23, 24
sNx0, sNx1 = 25, 26
sOp, sQp, sQOd = 27, 28, 29
sKV = 30
sFlag, sBit = 31, 32
sHead0 = 33
sJ = 34
sC, sThr, sTrip, sT5 = 36, 37, 38, 40
sQn, sOc = 41, 42
sPC, sCode = 46, 48
sT0, sT1, sT2, sT3 = 62, 63, 64, 65
sPn = 69
sQn2, sT52, sPn2 = 43, 44, 45
sOu = [84, 85, 86, 87, 66]

vKA = [0, 1]
vVA = [2, 3, 4, 5]
vD = [6, 7, 8]
vOG, vPR = 9, 10
vQA = [11, 12]
vNM = [13, 14, 15, 16, 17]
vIDX = 18
vX = vOW = 19
PREG = 20
TS = 60
SREG = 72
O2 = 112
TMP = SREG + 8
OV = 160
QA0 = 0
FR = 120
aSEL = 152
aRB = 156
OA = 160


def S(u, kt):
    return SREG + (u * 2 + kt) * 4


def Pop(u, b):
    return PREG + 16 + 4 * b if u == 4 else PREG + 24 * b + 4 * u


def Pdst(u, kt, h, b):
    return Pop(u, b) + 2 * kt + h


def Lw(u):
    return TS + 2 * u


def Qr(u, ks):
    i = u * 6 + ks
    return 'a[%d:%d]' % (QA0 + 4 * i, QA0 + 4 * i + 3)


def O(u, t):
    if u < 2:
        return 'v', OV + (u * 12 + t) * 4
    if u == 2:
        return 'v', O2 + 4 * t
    return 'a', OA + ((u - 3) * 12 + t) * 4


def Oq(u, t):
    f, i = O(u, t)
    return '%s[%d:%d]' % (f, i, i + 3)


def vr(x, n=4):
    return 'v[%d:%d]' % (x, x + n - 1)


def ar(x, n=4):
    return 'a[%d:%d]' % (x, x + n - 1)


class Opt:
    pol_kv = ''
    pol_q = 'nt'
    pol_o = 'nt'
    thr = 0x21800000
    stamps = False
    prof = False
    verbose = False
    vlead = 4
    mpos5 = 41
    mpos4 = 33
    wshift = 0
    wbit = 1
    hoist5 = 5
    hoist4 = 3
    ipre = 32
    ldsw = 40
    ldsw2 = 72
    stw = 52
    dmad = 12
    bar = 16
    stgap = 60
    lds_lat = 120
    wait_lat = 120
    lds_occ = 4
    lds_occ_tr = 4
    lds_q = 0
    tries = 6
    dma_t1 = 0.95
    qo_t0 = 0.06
    qo_t1 = 0.3
    epi_prio = -45000
    q2wait_t = 900
    q3wait_t = 1800
    q4wait_t = 2300
    yb_t = 1500
    qd_t0 = 200
    qd_gap = 130
    grp = 4
    lead = 2
    bc_extra = 0
    b_len5 = 3400
    b_len4 = 2700
    noq = False
    nost = False
    nobar = False
    kvfix = False
    drop = ''
    short = True
    fine = ''
    fine_bar = False
    fine_vm = False
    fine_lo = 0
    fine_hi = 100000
    pair_st = False
    c_lead = 4
    dm = 24
    dw0 = 0
    dw = 80
    mix = True
    align = False
    onerole = -1
    perm = False
    around = ''
    dmaw = 0
    dmav = 0
    qk = 'S'
    pv = 'b2'
    endp = '60,52,40,72'
    endm = False
    endo = ''
    order0 = 'kqKQ'
    rev = 0
    lds_lat_tr = 120
    v2c = True
    tries_tr = 16
    sweeps = 1
    ilate = True
    irefresh = 5
    start2 = True
    groups5 = '0,1,2,3,4'
    groups4 = '0,1,2,3'
    order2 = 'kqKLvQ'
    end2 = False
    endg5 = '01,234'
    endg4 = '01,23'
    end_tail = 6
    dclus = 0
    burn = 0
    pad = 0
    vgap = 133
    glue_tr = False
    stww = 0
    max16 = True
    bias = ''
    maxp = True
    z64 = True
    two_w = True
    dr = '(0,)'
    big = 0
    bc_seeds = ''
    force = False


opt = Opt()


def I(text, **kw):
    return Inst(text, **kw)


def chain_seq(seq, chain):
    for x in seq:
        if chain[0] is not None:
            x.after.append(chain[0])
        chain[0] = x


def pol(p):
    return (' ' + p) if p else ''


def fr(n):
    return FR + 4 * (n % 8)


def k_read(n, kt, ks, slot, key):
    r = fr(n)
    return r, I('ds_read_b128 %s, v%d offset:%d' % (ar(r), vKA[ks % 2], slot * TILE + kt * 6144 + (ks // 2) * 128), tag=key)


def qk_stream(groups, slot, base=4):
    out, mf, reads = [], [], []
    n = base
    for grp in groups:
        grp = list(grp)
        for kt in range(2):
            reg = {}
            if opt.qk == 'A':
                seq = [(ks, u) for ks in range(6) for u in grp]
            else:
                seq = []
                for i, u in enumerate(grp):
                    up = opt.qk == 'C' or (len(grp) - 1 - i if kt == 0 else i) % 2 == 0
                    if opt.qk == 'R':
                        up = i % 2 == 0 or i == len(grp) - 1
                    seq += [(ks, u) for ks in (range(6) if up else range(5, -1, -1))]
            seen = set()
            for ks, u in seq:
                if ks not in reg:
                    reg[ks], rd = k_read(n + ks, kt, ks, slot, ('kf', kt, ks, grp[0]))
                    out.append(rd)
                    reads.append(rd)
                d = vr(S(u, kt))
                m = I('v_mfma_f32_16x16x32_bf16 %s, %s, %s, %s' % (d, ar(reg[ks]), Qr(u, ks), d if u in seen else '0'), tag=('qk', kt, ks, u))
                seen.add(u)
                out.append(m)
                mf.append(m)
            n += 6
    return out, mf, reads


def v_reads(slot, b, lo, hi, base=0):
    out = []
    for t in range(lo, hi):
        r = fr(base + t)
        off = (t // 4) * 128 + slot * TILE
        x, y = off, off + 6144
        out += [I('ds_read_b64_tr_b16 %s, v%d offset:%d' % (ar(r, 2), vVA[t % 4], x), tag=('vf', t)),
                I('ds_read_b64_tr_b16 %s, v%d offset:%d' % (ar(r + 2, 2), vVA[t % 4], y), tag=('vf', t))]
    return out


def pv_stream(T, b, slot, first, base=0):
    out, mf, reads = [], [], []
    if opt.pv == 'tu':
        seq = [(t, u) for t in range(12) for u in range(T)]
    elif opt.pv == 'sn':
        seq = [(t, u) for t in range(12) for u in (range(T) if t % 2 == 0 else range(T - 1, -1, -1))]
    else:
        seq = []
        for k in range(6):
            for i, u in enumerate(range(T) if k % 2 == 0 else range(T - 1, -1, -1)):
                seq += [(2 * k, u), (2 * k + 1, u)] if i % 2 == 0 else [(2 * k + 1, u), (2 * k, u)]
    seen = set(range(opt.vlead))
    for t, u in seq:
        if t not in seen:
            seen.add(t)
            rd = v_reads(slot, b, t, t + 1, base)
            out += rd
            reads += rd
        d = Oq(u, t)
        m = I('v_mfma_f32_16x16x32_bf16 %s, %s, %s, %s' % (d, ar(fr(base + t)), vr(Pop(u, b)), '0' if first else d), tag=('pv', t, u))
        out.append(m)
        mf.append(m)
    return out, mf, reads


def q_reads(u, place):
    return [I('ds_read_b128 %s, v%d offset:%d' % (Qr(u, ks), vQA[ks % 2], place * 6144 + (ks // 2) * 128), tag=('qf', u, ks))
            for ks in range(6)]


def hoist(T):
    return opt.hoist5 if T == 5 else opt.hoist4


def sm_pairs(T):
    return [(u, 0, h) for u in range(T) for h in range(2)] + [(u, 1, h) for u in range(T) for h in range(2)]


def sm_exp(u, kt, h):
    a = S(u, kt) + 2 * h
    return [I('v_fma_f32 v%d, v%d, s%d, v%d' % (a, a, sC, vNM[u])),
            I('v_fma_f32 v%d, v%d, s%d, v%d' % (a + 1, a + 1, sC, vNM[u])),
            I('v_exp_f32 v%d, v%d' % (a, a)),
            I('v_exp_f32 v%d, v%d' % (a + 1, a + 1))]


def sm_cvt(u, kt, h, b):
    a = S(u, kt) + 2 * h
    return I('v_cvt_pk_bf16_f32 v%d, v%d, v%d' % (Pdst(u, kt, h, b), a, a + 1))


def sm_head(T, b):
    out = []
    for (u, kt, h) in sm_pairs(T)[:hoist(T)]:
        out += sm_exp(u, kt, h) + [sm_cvt(u, kt, h, b)]
    return out


def sm_body(T, b, lo):
    pre, post = [], []
    for (u, kt, h) in sm_pairs(T)[lo:]:
        pre += sm_exp(u, kt, h)
        pre.append(sm_cvt(u, kt, h, b))
    return pre, post


def sums(T, b, first=False):
    out = []
    for q, u in enumerate((0, 2, 4)[:T - 2]):
        if first:
            if opt.z64:
                out += [I('v_pk_mov_b32 %s, 0, 0' % vr(TS + 4 * q + i, 2)) for i in (0, 2)]
            else:
                out += [I('v_mov_b32 v%d, 0' % (TS + 4 * q + i)) for i in range(4)]
        if u == 4 and b == 0:
            continue
        m = I('v_smfmac_f32_16x16x64_bf16 %s, %s, %s, v%d' % (vr(TS + 4 * q), ar(aSEL), vr(Pop(u, b if u < 4 else 0), 8), vIDX),
              tag=('ts', u))
        m.floating = True
        out.append(m)
    return out


def max_pairs(T):
    out = []
    for a in range(0, T - 1, 2):
        ra, rb = Pop(a, 1), Pop(a + 1, 1)
        for u, r in ((a, ra), (a + 1, rb)):
            out += [I('v_max3_f32 v%d, v%d, v%d, v%d' % (r, S(u, 0), S(u, 0) + 1, S(u, 0) + 2)),
                    I('v_max_f32 v%d, v%d, v%d' % (r, r, S(u, 0) + 3))]
        out += [I('v_permlane32_swap_b32 v%d, v%d' % (ra, rb)),
                I('v_max_f32 v%d, v%d, v%d' % (ra, ra, rb)),
                I('v_mov_b32 v%d, v%d' % (rb, ra)),
                I('v_permlane16_swap_b32 v%d, v%d' % (rb, ra)),
                I('v_max_f32 v%d, v%d, v%d' % (ra, ra, rb)),
                I('v_mul_f32_e64 v%d, -s%d, v%d' % (vNM[a + 1], sC, ra)),
                I('v_mov_b32 v%d, v%d' % (vNM[a], vNM[a + 1])),
                I('v_permlane32_swap_b32 v%d, v%d' % (vNM[a], vNM[a + 1]))]
    return out + (max_init(T, T - 1) if T & 1 else [])


def max_init(T, lo=0):
    out = []
    for u in range(lo, T):
        s = [S(u, kt) + i for kt in range(2) for i in range(4)]
        r = Pop(u, 1)
        x = r + 1
        out.append(I('v_max3_f32 v%d, v%d, v%d, v%d' % (r, s[0], s[1], s[2])))
        if opt.max16:
            out.append(I('v_max_f32 v%d, v%d, v%d' % (r, r, s[3])))
        else:
            out += [I('v_max3_f32 v%d, v%d, v%d, v%d' % (r, r, s[3], s[4])),
                    I('v_max3_f32 v%d, v%d, v%d, v%d' % (r, r, s[5], s[6])),
                    I('v_max_f32 v%d, v%d, v%d' % (r, r, s[7]))]
        out += [I('v_mov_b32 v%d, v%d' % (x, r)),
                I('v_permlane32_swap_b32 v%d, v%d' % (x, r)),
                I('v_max_f32 v%d, v%d, v%d' % (r, r, x)),
                I('v_mov_b32 v%d, v%d' % (x, r)),
                I('v_permlane16_swap_b32 v%d, v%d' % (x, r)),
                I('v_max_f32 v%d, v%d, v%d' % (r, r, x)),
                I('v_mul_f32_e64 v%d, -s%d, v%d' % (vNM[u], sC, r)) if not opt.bias else
                I('v_fma_f32 v%d, -s%d, v%d, %s' % (vNM[u], sC, r, opt.bias))]
    return out


def dma_tile(kind, n, slot, chain, t0, t1, after=(), src=None, switch=False):
    srd, off, w3 = (SRD_K, sOffK, sW3) if kind == 'k' else (SRD_V, sOffV, sW3V)
    dm = []
    out = []
    if switch:
        out += [I('s_cmp_eq_u32 s%d, 1' % sTrip), I('s_cselect_b32 s%d, s%d, s%d' % (off, sNx1, off))]
    out.append(I('s_add_u32 m0, s%d, %d' % (w3, slot * TILE)))
    for c in range(3):
        d = I('buffer_load_dwordx4 v%d, s[%d:%d], s%d offen offset:%d%s lds' %
              (vD[c], srd, srd + 3, off if src is None else src, c * 1024, pol(opt.pol_kv)), vm_id=(kind, n))
        d.notbefore = int(t0 + (t1 - t0) * c / 3)
        d.prio = -100000
        d.after += list(after)
        out.append(d)
        dm.append(d)
    if src is None and not opt.kvfix:
        out.append(I('s_add_u32 s%d, s%d, %d' % (off, off, TILE)))
    chain_seq(out, chain)
    return out, dm


def q_group(sl, imm, tag):
    return ([I('s_add_u32 m0, s%d, %d' % (sl, imm))] +
            [I('buffer_load_dwordx4 v%d, s[%d:%d], s%d offen offset:%d%s lds' % (vD[c], SRD_Q, SRD_Q + 3, sQp, c * 1024, pol(opt.pol_q)),
               vm_id=tag) for c in range(3)] +
            [I('s_add_u32 s%d, s%d, 3072' % (sQp, sQp))])


def park_out(i, chain, t0, t1):
    out = []
    for c in range(3):
        rb = aRB
        t = int(t0 + (t1 - t0) * c / 3)
        r = I('ds_read_b128 %s, v%d offset:%d' % (ar(rb), vPR, i * 3072 + c * 1024))
        r.notbefore = max(0, t - 260)
        r.prio = -30000
        st = I('buffer_store_dwordx4 %s, v%d, s[%d:%d], s%d offen offset:%d%s' % (ar(rb), vOG, SRD_O, SRD_O + 3, sOp, c * 128, pol(opt.pol_o)),
               vm_id=('st',))
        st.notbefore = t + 160
        st.prio = -100000
        seq = [st] + ([I('s_add_u32 s%d, s%d, 3072' % (sOp, sOp))] if c == 2 else [])
        chain_seq(seq, chain)
        out += [r] + seq
    return out


def park_in(i, chain, t0, t1, tag='qg'):
    u = q_group(sQOd, 0, (tag, i)) + [I('s_add_u32 s%d, s%d, 3072' % (sQOd, sQOd))]
    for c in range(3):
        u[1 + c].notbefore = int(t0 + (t1 - t0) * c / 3)
        u[1 + c].prio = -100000
    chain_seq(u, chain)
    return u


def vm_wait(need):
    w = I('s_waitcnt vmcnt(0)')
    w.tag = {'need': need}
    return w


def barrier(need, after, notbefore, done=()):
    w = vm_wait(need)
    w.after += list(after)
    w.notbefore = notbefore
    w.prio = -100000
    b = I('s_barrier' if not opt.nobar else 's_nop 0')
    b.kind = 'barrier'
    b.after.append(w)
    b.prio = -100000
    if done:
        b.reads = set().union(*[r.writes for r in done])
        b.after += list(done)
        w.after += list(done)
    return w, b


def early_v(slot, b, H, T, bar=None, base=0):
    out = v_reads(slot, b, 0, opt.vlead, base)
    for r in out:
        t = r.tag[1]
        if bar is not None:
            r.after.append(bar)
        r.prio = -(H + 400) + 16 * T * t
        r.notbefore = H - 16 * 12 + 16 * T * t // 2
    return out


def item_calc(pn, sQn=sQn, sT5=sT5):
    o = []
    A = lambda t: o.append(I(t))
    A('s_lshl_b32 s%d, s%d, 5' % (sT0, pn))
    A('s_add_u32 s%d, s%d, s%d' % (sT0, sT0, sJ))
    A('s_mul_i32 s%d, s%d, 171' % (sT1, sT0))
    A('s_lshr_b32 s%d, s%d, 9' % (sT1, sT1))
    A('s_mul_i32 s%d, s%d, 3' % (sT2, sT1))
    A('s_sub_u32 s%d, s%d, s%d' % (sT0, sT0, sT2))
    if opt.rev:
        A('s_lshl_b32 s%d, s%d, 1' % (sT0, sT0))
        A('s_cmp_eq_u32 s%d, 4' % sT0)
        A('s_cselect_b32 s%d, 1, s%d' % (sT0, sT0))
    if opt.onerole >= 0:
        A('s_mov_b32 s%d, %d' % (sT0, opt.onerole))
    if opt.perm:
        A('s_mul_i32 s%d, s%d, 187' % (sT2, sT1))
        A('s_lshr_b32 s%d, s%d, 11' % (sT2, sT2))
        A('s_mul_i32 s%d, s%d, 65' % (sT3, sT2))
        A('s_mul_i32 s%d, s%d, 6' % (sT1, sT1))
        A('s_sub_u32 s%d, s%d, s%d' % (sT1, sT1, sT3))
        A('s_cmp_gt_u32 s%d, 59' % sT1)
        A('s_subb_u32 s%d, s%d, 0' % (sT1, sT1))
    A('s_add_u32 s%d, s%d, s%d' % (sT1, sT1, sHead0))
    A('s_mul_i32 s%d, s%d, %d' % (sKV, sT1, KHEAD))
    A('s_mul_i32 s%d, s%d, %d' % (sQn, sT1, QHEAD))
    A('s_lshl_b32 s%d, s%d, 2' % (sT1, sW))
    A('s_add_u32 s%d, s%d, 21' % (sT2, sT1))
    A('s_cmp_eq_u32 s%d, 0' % sW)
    A('s_cselect_b32 s%d, 20, s%d' % (sT2, sT2))
    A('s_cselect_b32 s%d, 1, 0' % sT5)
    A('s_add_u32 s%d, s%d, 37' % (sT3, sT1))
    A('s_cmp_eq_u32 s%d, 2' % sT0)
    A('s_cselect_b32 s%d, s%d, s%d' % (sT2, sT3, sT2))
    A('s_cselect_b32 s%d, 0, s%d' % (sT5, sT5))
    A('s_add_u32 s%d, s%d, s%d' % (sT3, sT1, sW))
    A('s_cmp_eq_u32 s%d, 0' % sT0)
    A('s_cselect_b32 s%d, s%d, s%d' % (sT2, sT3, sT2))
    A('s_cselect_b32 s%d, 1, s%d' % (sT5, sT5))
    A('s_mul_i32 s%d, s%d, 6144' % (sT2, sT2))
    A('s_add_u32 s%d, s%d, s%d' % (sQn, sQn, sT2))
    return o


def look_ahead(d):
    o = [I('s_add_u32 s%d, s%d, %d' % (sPn2, sPn, d))] + item_calc(sPn2, sQn2, sT52)
    return o + [I('s_cmp_ge_u32 s%d, %d' % (sPn2, NPASS)),
                I('s_cselect_b32 s%d, %d, s%d' % (sQn2, QBYTES, sQn2)),
                I('s_cselect_b32 s%d, %d, s%d' % (sKV, KBYTES, sKV))]


def new_pass(first):
    o = [I('s_mov_b32 s%d, %s' % (sOp, QBYTES if first else 's%d' % sOc)),
         I('s_mov_b32 s%d, s%d' % (sOc, sQn)),
         I('s_add_u32 s%d, s%d, 1' % (sPn, sPn))]
    if first:
        o += look_ahead(0)
    o += [I('s_mov_b32 s%d, s%d' % (sQn, sQn2)), I('s_mov_b32 s%d, s%d' % (sT5, sT52)),
          I('s_add_u32 s%d, s%d, s%d' % (sNx0, sKV, sW3)),
          I('s_add_u32 s%d, s%d, %d' % (sNx1, sNx0, TILE)),
          I('s_mov_b32 s%d, s%d' % (sQp, sQn)),
          I('s_mov_b32 s%d, s%d' % (sQOd, sQOw))]
    return o


def phase_iter(T, j, n0=0, qo=None, tail=(), vtail=(), shift=0, loop=False):
    b = j & 1
    nb = 1 - b
    chain = [None]
    prog = []
    H = 16 * 25 * T
    pre_vm = []
    if qo and not (j & 1 and opt.pair_st):
        d = (park_out if j & 1 else park_in)(qo[0], chain, H * opt.qo_t0, H * opt.qo_t1)
        pre_vm = [x for x in d if x.kind in ('dma', 'vst')]
        prog += d
    if loop and j == opt.irefresh:
        assert j & 1 and hoist(T) >= 2 and not opt.pair_st
        d = code_refresh(0)
        prog += d
    if loop and j == 4:
        d = look_ahead(1)
        chain_seq(d, [None])
        prog += d
    pre, post = sm_body(T, b, hoist(T))
    prog += pre
    pv, pvm, vre = pv_stream(T, nb, (j - 1) % 3, j == 1)
    prog += pv
    tm = 16 * ((opt.mpos5 if T == 5 else opt.mpos4) - shift)
    w, bar = barrier([('k', n0 + j + 1), ('v', n0 + j)] + ([('code', 0)] if loop and j == opt.irefresh + 1 else []),
                     pre_vm, tm - 16, done=vre)
    prog += [w, bar]
    prog += post
    prog += sums(T, b)
    qk, qkm, kre = qk_stream([range(T)], (j + 1) % 3)
    for r in kre[:8]:
        r.after.append(bar)
        r.prio = -30000
    prog += qk
    t0 = tm + 100
    t1 = H * opt.dma_t1
    d, dm = dma_tile('v', n0 + j + 2, (j + 2) % 3, chain, t0, (t0 + t1) / 2, after=[bar], switch=loop and j == 8)
    d2, dm2 = dma_tile('k', n0 + j + 3, j % 3, chain, (t0 + t1) / 2, t1, after=[bar], switch=loop and j == 7)
    if opt.dclus:
        for g in (dm, dm2):
            for c, x in enumerate(g):
                x.notbefore = g[0].notbefore + opt.dclus * c
        for c, x in enumerate([x for x in pre_vm if x.kind == 'dma']):
            x.notbefore = pre_vm[0].notbefore + opt.dclus * c
    if qo and j & 1 and opt.pair_st:
        po = park_out(qo[0], [None], 0, 0)
        for x, y in zip([x for x in po if x.kind == 'vst'], (dm + dm2)[1::2]):
            x.notbefore = y.notbefore
            x.after.append(bar)
            y.after.append(x)
            y.glue = x
        for x, y in zip([x for x in po if x.kind == 'ds'], (dm + dm2)[1::2]):
            x.notbefore = y.notbefore - 260
        prog += [x for x in po if x.kind != 'salu']
        d2 = d2 + [x for x in po if x.kind == 'salu']
        chain_seq(d2[-1:], chain)
    prog += d + d2
    prog += sm_head(T, nb)
    prog += list(vtail)
    if tail:
        tail = list(tail)
        for x in tail:
            x.prio = -90000
        chain_seq(tail, chain)
        prog += tail
    prog += early_v(j % 3, b, H, T)
    return prog


def flag_ops(T):
    t = [Lw(u) for u in range(T)]
    out = [I('v_add_f32 v%d, v%d, v%d' % (x, x, x + 1)) for x in t]
    if T == 5:
        out += [I('v_add_f32 v%d, v%d, v%d' % (t[4], t[4], t[4] + i)) for i in (2, 3)]
    out += [I('v_rcp_f32 v%d, v%d' % (x, x)) for x in t]
    x = TS + 1
    out.append(I('v_min3_f32 v%d, v%d, v%d, v%d' % (x, t[0], t[1], t[2])))
    if T == 5:
        out.append(I('v_min3_f32 v%d, v%d, v%d, v%d' % (x, x, t[3], t[4])))
    else:
        out.append(I('v_min_f32 v%d, v%d, v%d' % (x, x, t[3])))
    out += [I('v_cmp_nlt_f32 vcc, s%d, v%d' % (sThr, x)),
            I('s_cmp_lg_u64 vcc, 0'),
            I('s_cselect_b32 s%d, s%d, 0' % (sT0, sBit)),
            I('s_or_b32 s%d, s%d, s%d' % (sFlag, sFlag, sT0)),
            I('s_lshl_b32 s%d, s%d, 1' % (sBit, sBit))]
    return out


def q_late(u, place, chain, t0, guard=()):
    out, vm = [], []
    for rg in range(2):
        g = q_group(sQOw, place * 6144 + rg * 3072, ('ql', u))
        for c in range(3):
            x = g[1 + c]
            if guard:
                x.reads = x.reads | set().union(*[r.writes for r in guard])
            x.notbefore = t0 + opt.qd_gap * (3 * rg + c)
            x.prio = -100000
            vm.append(x)
        chain_seq(g, chain)
        out += g
    return out, vm


def phase_A(T, Tn, last):
    chain = [None]
    prog = [I('v_subrev_u32 v%d, %d, v%d' % (vPR, STG, vPR))]
    H = 16 * 13 * T + 4 * 20 * T
    vm = []
    if not last:
        w = vm_wait([('qg', 3)])
        w.prio = -100000
        prog.append(w)
        q0 = q_reads(0, 0)
        q1 = q_reads(1, 1)
        for r in q0 + q1:
            r.after.append(w)
        for r in q0:
            r.prio = -50000
        prog += q0 + q1
        d, vm = q_late(3, 0, chain, opt.qd_t0, q0)
        prog += d
    pre, post = sm_body(T, 1, hoist(T))
    prog += pre
    pv, pvm, vre = pv_stream(T, 0, 2, False)
    prog += pv
    w, bar = barrier([('v', 15)], vm, 16 * 10 * T, done=vre)
    prog += [w, bar]
    prog += post
    prog += sums(T, 1)
    if not last:
        d, dm = dma_tile('k', 16, 0, chain, 0, 0, after=[bar], src=sNx0)
        prog += d
    prog += early_v(0, 1, 16 * 13 * T + 200, T, bar, 4)
    return prog


def epi_order(T, Tn):
    if T == 5:
        o = [((c, 3), (c, 4)) for c in range(3)]
    else:
        o = [((0, 3), (1, 3)), ((2, 3),)]
    seq = [(c, u) for u in ((2, 0, 1) if Tn == 5 else (1, 2, 0)) for c in range(3)]
    pk = [tuple(seq[i:i + 2]) for i in range(0, 9, 2)]
    if Tn == 0 and opt.endo:
        pk = [((0, 0), (0, 1)), ((0, 2), (1, 2)), ((1, 0), (1, 1)), ((2, 0), (2, 1)), ((2, 2),)]
        pat = {5: 'PDPPDDPP', 4: 'PPDPPDP'}[T] if opt.endo == 'a' else {5: 'DPDPPDPP', 4: 'PDPPDPP'}[T]
        return [(o if x == 'D' else pk).pop(0) for x in pat]
    if not opt.mix:
        return o + pk
    pat = {(5, 5): 'DDPDPPPP', (5, 4): 'DPDPDPPP', (4, 5): 'DPDPPPP', (4, 4): 'PDPDPPP', (5, 0): 'PDPDPDPP', (4, 0): 'PDPDPPP'}[T, Tn]
    return [(o if x == 'D' else pk).pop(0) for x in pat]


def epilogue(T, Tn, last, gate, pool, order=None):
    out = []
    A = lambda t: out.append(I(t))
    inv = [Lw(u) for u in range(T)]
    wa = [(Pop(4, 0) if order is None else S(0, 0)) + i for i in range(4)]
    wb = [vOW] + [Pop(3, 0) + i for i in range(1, 4)]
    k0 = len(out)
    A('v_and_b32 v%d, 1024, v%d' % (wa[0], vOW))
    A('v_lshl_add_u32 v%d, v%d, 1, v%d' % (wa[0], wa[0], vOW))
    for i in range(1, 4):
        A('v_xor_b32 v%d, %d, v%d' % (wa[i], 32 * i, wa[0]))
        if order is None:
            A('v_xor_b32 v%d, %d, v%d' % (wb[i], 32 * i, vOW))
    for x in out[k0:]:
        x.prio = -70000
    steps = []
    prev = [None]
    stores = []

    def ds(x):
        x.prio = opt.epi_prio
        if prev[0] is not None:
            x.after.append(prev[0])
        prev[0] = x
        out.append(x)
    used = {}
    seen = set()
    freed = []
    parked = False
    for k, pair in enumerate(order or epi_order(T, Tn)):
        if (pair[0][1] < 3 or order is not None) != parked:
            parked = not parked
        done = []
        for tt in range(4):
            xs = []
            steps.append([])
            for j, (c, u) in enumerate(pair):
                fl, o0 = O(u, 4 * c + tt)
                if fl == 'a':
                    cand = [q for q in pool(len(steps) - 1) + freed if q not in xs]
                    x = min(cand, key=lambda q: used.get(q, -1))
                    for i in range(4):
                        A('v_accvgpr_read_b32 v%d, a%d' % (x + i, o0 + i))
                else:
                    x = o0
                    done.append(x)
                used[x] = len(steps)
                for i in (0, 2):
                    A('v_pk_mul_f32 v[%d:%d], v[%d:%d], v[%d:%d] op_sel_hi:[1,0]' % (x + i, x + i + 1, x + i, x + i + 1, inv[u], inv[u] + 1))
                    out[-1].reads.discard(('v', inv[u] + 1))
                    steps[-1].append(out[-1])
                A('v_cvt_pk_bf16_f32 v%d, v%d, v%d' % (x, x, x + 1))
                A('v_cvt_pk_bf16_f32 v%d, v%d, v%d' % (x + 1, x + 2, x + 3))
                xs.append(x)
            offs = [u % 3 * 6144 + c * 1024 if parked else STG + 2048 * j for j, (c, u) in enumerate(pair)]
            if len(pair) == 2:
                w = I('ds_write2st64_b64 v%d, v[%d:%d], v[%d:%d] offset0:%d offset1:%d' %
                      ((wa if parked else wb)[tt], xs[0], xs[0] + 1, xs[1], xs[1] + 1, offs[0] // 512, offs[1] // 512))
            else:
                w = I('ds_write_b64 v%d, v[%d:%d] offset:%d' % ((wa if parked else wb)[tt], xs[0], xs[0] + 1, offs[0]))
            for c, u in pair:
                if u not in seen:
                    seen.add(u)
                    w.after += gate.get(u, [])
            ds(w)
        freed += done
        for j, (c, u) in enumerate(pair):
            if parked and not last:
                continue
            rb = []
            for rho in range(2):
                rb.append(min(pool(len(steps) + 1) + freed, key=lambda q: used.get(q, -1)))
                used[rb[-1]] = len(steps) + 2
                ds(I('ds_read_b128 %s, v%d offset:%d' % (vr(rb[rho]), vPR, offs[j] + rho * (3072 if parked else 1024))))
            for rho in range(2):
                st = I('buffer_store_dwordx4 %s, v%d, s[%d:%d], s%d offen offset:%d%s' %
                       (vr(rb[rho]), vOG, SRD_O, SRD_O + 3, sOu[u], rho * 3072 + c * 128, pol(opt.pol_o)), vm_id=('st',))
                out.append(st)
                stores.append(st)
    return out, stores, steps


def phase_B(T, Tn, last, more=()):
    chain = [None]
    prog = [I('s_add_u32 s%d, s%d, %d' % (sOu[u], sOc, u * 6144)) for u in (range(T) if last else range(3, T))]
    chain_seq(prog, chain)
    fo = flag_ops(T)
    chain_seq([x for x in fo if x.kind == 'salu'], chain)
    prog += fo
    pv, mf, vre = pv_stream(T, 1, 0, False, 4)
    for r in vre:
        r.prio = -60000
    w2 = vm_wait([('qg', 5)])
    w2.prio = -50000
    w2.notbefore = opt.q2wait_t if not last else 0
    gate = {}
    vm = []
    if last:
        gate = {u: [w2] for u in range(3)}
        prog.append(w2)
    else:
        if Tn == 5:
            d, vm = q_late(4, 1, chain, 60)
            prog += d
        w2.after += vm
        prog.append(w2)
        q2 = q_reads(2, 2)
        for r in q2:
            r.after.append(w2)
            r.prio = -50000
        prog += q2
        gate[2] = q2
    prog += pv
    qk, qkm = [], []
    if not last:
        w, bar = barrier([('k', 16)], vm + [w2], opt.yb_t, done=vre)
        prog += [w, bar]
        d, dm = dma_tile('v', 16, 0, chain, opt.yb_t + 100, opt.yb_t + 100 + 3 * opt.vgap, after=[bar], src=sNx0)
        prog += d
        if not opt.v2c:
            d, dm2 = dma_tile('v', 18, 2, chain, opt.yb_t + 500, opt.yb_t + 1100)
            prog += d
        prevw = dm
        for u, place, t in ((3, 0, opt.q3wait_t), (4, 1, opt.q4wait_t))[:Tn - 3]:
            wq = vm_wait([('ql', u)])
            wq.prio = -50000
            wq.notbefore = t
            wq.after += prevw
            prevw = [wq]
            prog.append(wq)
            rd = q_reads(u, place)
            for r in rd:
                r.after.append(wq)
                r.prio = -50000
            prog += rd
            gate[place] = rd
        qk, qkm, kre = qk_stream([range(3), range(3, Tn)] if opt.sweeps == 2 else [range(Tn)], 0, 0)
        for r in kre[:8]:
            r.after.append(bar)
    allm = mf + qkm + list(more)
    span = len(mf) + len(qkm) + min(len(more), opt.bc_extra)
    order = epi_order(T, Tn)
    at = {x.tag[1:]: i for i, x in enumerate(mf)}
    need = [max(at[4 * c + tt, u] for c, u in pair) for pair in order for tt in range(4)]
    ns = len(need)
    pos = []
    for s_ in range(ns):
        even = int(round(opt.lead * opt.grp + (span - opt.lead * opt.grp) * s_ / max(ns - 1, 1)))
        pos.append(min(span, max(need[s_] + 4, even, pos[-1] if pos else 0)))
    firstw = {}
    for i, m in enumerate(allm):
        if m.tag[0] == 'qk':
            firstw.setdefault(S(m.tag[3], m.tag[1]), i)

    def pool(s_):
        return [S(u, kt) for u in range(5) for kt in range(2) if firstw.get(S(u, kt), 9999) >= pos[min(s_ + 2, ns - 1)]]
    ep, stores, steps = epilogue(T, Tn, last, gate, pool)
    for s_, burst in enumerate(steps):
        for x in burst:
            x.after.append(allm[pos[s_] - 1])
        if pos[s_] < len(allm):
            allm[pos[s_]].after += burst
    prog += ep
    if not last:
        prog += qk
        o = new_pass(False)
        chain_seq(o, chain)
        prog += o
    return prog


def phase_E(T):
    chain = [None]
    prog = [I('s_add_u32 s%d, s%d, %d' % (sOu[u], sOc, u * 6144)) for u in range(T)]
    chain_seq(prog, chain)
    prog.append(I('v_subrev_u32 v%d, %d, v%d' % (vPR, STG, vPR)))
    w, bar = barrier([('v', 15), ('qg', 5)], [], 0)
    prog += [w, bar]
    sm = sm_body(T, 1, hoist(T))[0]
    groups = [[int(c) for c in g] for g in (opt.endg5 if T == 5 else opt.endg4).split(',')]
    allm = []
    n = 4
    for k, g in enumerate(groups):
        for x in sm:
            if (min(x.reads & {('v', r) for r in range(SREG, SREG + 40)})[1] - SREG) // 8 in g:
                x.prio = -80000 + 5000 * k
                prog.append(x)
        e = 0
        for t in range(12):
            reg = {}
            for u in (g if t % 2 == 0 else g[::-1]):
                for e in (e, 1 - e):
                    if e not in reg:
                        reg[e] = n
                        rd = v_reads(2 if e == 0 else 0, 0, t, t + 1, n - t)
                        n += 1
                        for r in rd:
                            r.after.append(bar)
                            r.prio = -60000
                        prog += rd
                    m = I('v_mfma_f32_16x16x32_bf16 %s, %s, %s, %s' % (Oq(u, t), ar(fr(reg[e])), vr(Pop(u, e)), Oq(u, t)), tag=('pv', t, u))
                    prog.append(m)
                    allm.append(m)
    prog += sums(T, 1)
    fo = flag_ops(T)
    chain_seq([x for x in fo if x.kind == 'salu'], chain)
    prog += fo
    order = []
    for g in groups:
        cs = [(c, u) for c in range(3) for u in g]
        order += [tuple(cs[i:i + 2]) for i in range(0, len(cs), 2)]
    at = {x.tag[1:]: i for i, x in enumerate(allm)}
    need = [max(at[4 * c + tt, u] for c, u in pair) for pair in order for tt in range(4)]
    pos = []
    for s_ in range(len(need)):
        even = int(round(need[0] + 4 + (len(allm) - need[0] - 4) * s_ / (len(need) - opt.end_tail)))
        pos.append(min(len(allm), max(need[s_] + 4, even, pos[-1] if pos else 0)))
    pool = lambda s_: [S(u, kt) for u in range(5) for kt in range(2) if (u, kt) != (0, 0) and (u >= T or u in groups[0] or s_ >= 12)]
    ep, stores, steps = epilogue(T, 0, True, {}, pool, order)
    for s_, burst in enumerate(steps):
        for x in burst:
            x.after.append(allm[pos[s_] - 1])
        if pos[s_] < len(allm):
            allm[pos[s_]].after += burst
    return prog + ep


def delay(prog, dt):
    for x in prog:
        if x.notbefore > 0:
            x.notbefore += dt
    return prog


def phase_BC(T, Tn):
    pc = delay(phase_C(Tn, 16, [('v', 18)] if opt.v2c else []), opt.b_len5 if T == 5 else opt.b_len4)
    pb = phase_B(T, Tn, False, [x for x in pc if x.kind == 'mfma' and not x.floating])
    bar = [x for x in pb if x.kind == 'barrier']
    k0 = [x for x in pb if x.kind == 'mfma' and x.tag[0] == 'qk'][-1:]
    for x in pc:
        if x.kind in ('ds', 'dma', 'barrier'):
            x.after += bar
        if x.kind == 'barrier':
            x.after += k0
        if x.kind == 'wait':
            x.after += [y for y in pb if y.kind == 'dma']
    return pb + pc


def phase_C(T, n0, extra=()):
    chain = [None]
    prog = []
    H = 16 * 13 * T + 4 * 44 * T
    vm = []
    for k, (kind, n) in enumerate(extra):
        d, dm = dma_tile(kind, n, (n - n0) % 3, chain, 32 + 400 * k, 32 + 400 * k + 3 * opt.vgap)
        prog += d
        vm += dm
    prog += max_pairs(T) if opt.maxp else max_init(T)
    pre, post = sm_body(T, 0, 0)
    prog += pre + post
    prog += sums(T, 0, True)
    qk, qkm, kre = qk_stream([range(T)], 1)
    for r in kre[:4]:
        r.prio = -50000
    for x in pre:
        if x.op == 'v_fma_f32':
            u, kt = divmod((min(x.writes)[1] - SREG) // 4, 2)
            if kt and 6 * u - opt.c_lead >= 0:
                x.after.append(qkm[6 * u - opt.c_lead])
    prog += qk
    w, bar = barrier([('v', n0)], vm, H - 16 * 24)
    prog += [w, bar]
    d, dm = dma_tile('k', n0 + 3, 0, chain, H - 16 * 22, H - 16 * 4, after=[bar])
    prog += d
    prog += sm_head(T, 1)
    prog += early_v(0, 0, H, T, bar)
    return prog


def start_pre():
    o = []
    o.append(I('s_mov_b32 s%d, s%d' % (sQp, sQn)))
    for it in opt.order0 if not opt.start2 else opt.order2:
        if it in 'kKL':
            u = 'kKL'.index(it)
            o += dma_tile('k', u, u, [None], 0, 0)[0]
        elif it == 'v':
            o += dma_tile('v', 0, 0, [None], 0, 0)[0]
        else:
            u = 'qQR'.index(it)
            for rg in range(2):
                o += q_group(sQOw, u * 6144 + rg * 3072, ('q0', u))
    for x in o:
        x.after = []
    if opt.ipre and opt.ilate:
        o += code_touch()
    o += late_addr() + [I('L_first:')]
    o.append(vm_wait([('k', 1)]))
    o.append(I('s_barrier'))
    return o


def phase_S(T):
    chain = [None]
    prog = []
    later = [('q', u) for u in range(2, T)] + [('v', 0), ('k', 2), ('v', 1), ('v', 2)]
    prev = []
    nxt = 0
    issued = {}
    tail = []
    rds = {}
    mx = max_init(T)
    pre, _ = sm_body(T, 0, 0)
    base = 0
    for u in range(T + 1):
        if u < T:
            w = vm_wait([('q0', u)])
            w.prio = -100000
            w.after += prev + issued.get(u, [])
            prog.append(w)
            rd = q_reads(u, u % 3)
            rds[u] = rd
            for r in rd:
                r.after.append(w)
                r.prio = -195000
            prog += rd
            for _ in range(1 if u < T - 2 else 2):
                it = later[nxt]
                nxt += 1
                if it[0] == 'q':
                    d = []
                    for rg in range(2):
                        d += q_group(sQOw, (it[1] % 3) * 6144 + rg * 3072, ('q0', it[1]))
                    chain_seq(d, chain)
                else:
                    d, _ = dma_tile(it[0], it[1], it[1], chain, 0, 0)
                dm = [x for x in d if x.kind == 'dma']
                for x in d:
                    x.prio = -190000
                for x in dm:
                    x.after.append(w)
                    if it[0] == 'q' and it[1] >= 3:
                        x.reads = x.reads | set().union(*[r.writes for r in rds[it[1] - 3]])
                if it[0] == 'q':
                    issued[it[1]] = dm
                else:
                    tail += dm
                prog += d
            qk, qk0, _ = qk_stream([[u]], 0, base)
            base += 12
            prog += qk
            prev = qk0[-1:]
            prog += mx[len(mx) // T * u:len(mx) // T * (u + 1)]
            prog += [x for x in pre if min(x.reads & {('v', r) for r in range(SREG, SREG + 40)})[1] // 8 == SREG // 8 + u]
        if u > 0:
            if u == T:
                base += (4 - base) % 8
            qk, qk1, _ = qk_stream([[u - 1]], 1, base)
            base += 12
            prog += qk
            if u < T - 1:
                prev = qk1[-1:]
    assert nxt == len(later)
    prog += sums(T, 0, True)
    o = new_pass(True)
    chain_seq(o, chain)
    prog += o
    w, bar = barrier([('v', 0)], tail + qk0[-1:], 0)
    prog += [w, bar]
    d, dm = dma_tile('k', 3, 0, chain, 0, 0, after=[bar])
    prog += d
    prog += sm_head(T, 1)
    prog += early_v(0, 0, 0, T, bar)
    return prog


def phase_S2(T):
    chain = [None]
    prog = []
    rds = {}
    mx = max_init(T)
    sm = [sm_body(T, b, 0)[0] for b in range(2)]
    mine = lambda b, u: [x for x in sm[b] if min(x.reads & {('v', r) for r in range(SREG, SREG + 40)})[1] // 8 == SREG // 8 + u]
    ring = [0]
    last = [[]]

    def load(it, w):
        if it[0] == 'q':
            d = []
            for rg in range(2):
                d += q_group(sQOw, (it[1] % 3) * 6144 + rg * 3072, ('q0', it[1]))
            chain_seq(d, chain)
        else:
            d, _ = dma_tile(it[0], it[1], it[1] % 3, chain, 0, 0)
        dm = [x for x in d if x.kind == 'dma']
        for x in d:
            x.prio = -190000
        for x in dm:
            x.after.append(w)
            if it[0] == 'q' and it[1] >= 3:
                x.reads = x.reads | set().union(*[r.writes for r in rds[it[1] - 3]])
        prog.extend(d)
        return dm

    def qk(g, n, bar=None, base=None):
        d, mf, rd = qk_stream([g], n, ring[0] if base is None else base)
        ring[0] += 12
        for r in rd[:8]:
            r.after += [bar] if bar else []
        prog.extend(d)
        last[0] = mf[-1:]
        return rd

    def pv(g, bar):
        rd = []
        for t in range(12):
            r = v_reads(0, 0, t, t + 1, ring[0])
            for x in r:
                x.after.append(bar)
            ms = [I('v_mfma_f32_16x16x32_bf16 %s, %s, %s, 0' % (Oq(u, t), ar(fr(ring[0] + t)), vr(Pop(u, 0))), tag=('pv', t, u))
                  for u in (g if t % 2 == 0 else g[::-1])]
            prog.extend(r + ms)
            rd += r
            last[0] = ms[-1:]
        ring[0] += 12
        return rd
    plan = {0: [('q', 2)], 1: [('q', 3)], 2: [('q', 4)] if T == 5 else [('v', 1)],
            3: [('v', 1)] if T == 5 else [('v', 2)], 4: [('v', 2)]}
    if 'R' in opt.order2:
        plan = {u: plan.get(u + 1, []) if u + 1 < T else [] for u in range(T)}
    vm = []
    groups = [[int(c) for c in g] for g in (opt.groups5 if T == 5 else opt.groups4).split(',')]
    for g in groups:
        for u in g:
            w = vm_wait([('q0', u)])
            w.prio = -100000
            w.after += last[0] + vm
            prog.append(w)
            rds[u] = q_reads(u, u % 3)
            for r in rds[u]:
                r.after.append(w)
                r.prio = -195000
            prog += rds[u]
            for it in plan[u]:
                vm = load(it, w) or vm
        k0 = qk(g, 0)
        for u in g:
            prog += mx[len(mx) // T * u:len(mx) // T * (u + 1)] + mine(0, u)
        if g is groups[-1]:
            w, ba = barrier([('v', 1)], vm, 0, done=k0)
            prog += [w, ba]
            d, vm = dma_tile('k', 3, 0, chain, 0, 0, after=[ba])
            prog += d
        k1 = qk(g, 1)
        for u in g:
            prog += mine(1, u)
        if g is groups[0]:
            w, b1 = barrier([('k', 2), ('v', 0)], last[0] + vm, 0)
            prog += [w, b1]
        v0 = pv(g, b1)
        if g is not groups[-1]:
            qk(g, 2, b1)
    o = new_pass(True)
    chain_seq(o, chain)
    prog += o
    w, bb = barrier([('v', 1)], vm, 0, done=v0 + k1)
    prog += [w, bb]
    prog += dma_tile('v', 3, 0, chain, 0, 0, after=[bb])[0] + dma_tile('k', 4, 1, chain, 0, 0, after=[bb])[0]
    prog += sums(T, 0, True) + sums(T, 1)
    qk(groups[-1], 2, None, 4)
    prog += sm_head(T, 0)
    prog += early_v(1, 1, 0, T, bb)
    return prog


def fixup_code():
    o = []
    A = lambda t: o.append(I(t))
    sP, sU, sN, sKo, sNT = 50, 51, 52, 53, 55
    vM, vA, vG = TMP, TMP + 1, TMP + 2
    va = [O2 + i for i in range(4)]
    A('L_fix:')
    A('s_sub_u32 s%d, s%d, %d' % (sT0, sQOw, VBASE))
    for m in range(4):
        A('v_add_u32 v%d, s%d, v%d' % (va[m], sT0, vVA[m]))
    A('v_mbcnt_lo_u32_b32 v%d, -1, 0' % vX)
    A('v_mbcnt_hi_u32_b32 v%d, -1, v%d' % (vX, vX))
    A('v_and_b32 v%d, 15, v%d' % (vA, vX))
    A('v_mul_u32_u24 v%d, 384, v%d' % (vA, vA))
    A('v_lshrrev_b32 v%d, 4, v%d' % (vG, vX))
    A('v_lshl_add_u32 v%d, v%d, 3, v%d' % (vG + 1, vG, vA))
    A('v_lshl_add_u32 v%d, v%d, 4, v%d' % (vA, vG, vA))
    A('L_fix_pass:')
    A('s_ff1_i32_b32 s%d, s%d' % (sP, sFlag))
    A('s_bitset0_b32 s%d, s%d' % (sFlag, sP))
    o.extend(item_calc(sP))
    A('s_add_u32 s%d, s%d, 4' % (sNT, sT5))
    A('s_mov_b32 s%d, 0' % sU)
    A('L_fix_tile:')
    for ks in range(6):
        A('buffer_load_dwordx4 %s, v%d, s[%d:%d], s%d offen offset:%d' % (Qr(0, ks), vA, SRD_Q, SRD_Q + 3, sQn, ks * 64))
    A('v_mov_b32 v%d, 0xff800000' % vM)

    def tile(srd):
        A('s_mov_b32 s%d, s%d' % (sT1, sKo))
        for rg in range(4):
            A('s_add_u32 m0, s%d, %d' % (sQOw, rg * 3072))
            for c in range(3):
                A('buffer_load_dwordx4 v%d, s[%d:%d], s%d offen offset:%d lds' % (vD[c], srd, srd + 3, sT1, c * 1024))
            A('s_add_u32 s%d, s%d, 3072' % (sT1, sT1))
        A('s_waitcnt vmcnt(0)')

    def scores():
        tile(SRD_K)
        for kt in range(2):
            for ks in range(6):
                A('ds_read_b128 %s, v%d offset:%d' % (ar(OA + 4 * (kt * 6 + ks)), vQA[ks % 2], kt * 6144 + (ks // 2) * 128))
        A('s_waitcnt lgkmcnt(0)')
        for kt in range(2):
            for ks in range(6):
                A('v_mfma_f32_16x16x32_bf16 %s, %s, %s, %s' % (vr(S(0, kt)), ar(OA + 4 * (kt * 6 + ks)), Qr(0, ks), vr(S(0, kt)) if ks else '0'))
        A('s_nop 7')
    s = [S(0, kt) + i for kt in range(2) for i in range(4)]

    def keys_from():
        A('s_mov_b32 s%d, s%d' % (sKo, sKV))
        A('s_mov_b32 s%d, 0' % sN)

    def keys_next(label):
        A('s_add_u32 s%d, s%d, %d' % (sKo, sKo, TILE))
        A('s_add_u32 s%d, s%d, 1' % (sN, sN))
        A('s_cmp_lt_u32 s%d, 16' % sN)
        A('s_cbranch_scc1 %s' % label)
    keys_from()
    A('L_fix_max:')
    scores()
    for i in range(0, 8, 2):
        A('v_max3_f32 v%d, v%d, v%d, v%d' % (vM, vM, s[i], s[i + 1]))
    keys_next('L_fix_max')
    A('v_mov_b32 v%d, v%d' % (vX, vM))
    A('v_permlane32_swap_b32 v%d, v%d' % (vX, vM))
    A('v_max_f32 v%d, v%d, v%d' % (vM, vM, vX))
    A('v_mov_b32 v%d, v%d' % (vX, vM))
    A('v_permlane16_swap_b32 v%d, v%d' % (vX, vM))
    A('v_max_f32 v%d, v%d, v%d' % (vM, vM, vX))
    A('v_mul_f32_e64 v%d, -s%d, v%d' % (vNM[0], sC, vM))
    for i in range(48):
        A('v_mov_b32 v%d, 0' % (OV + i))
    for i in range(4):
        A('v_mov_b32 v%d, 0' % (TS + i))
        A('v_mov_b32 v%d, 0' % (Pop(1, 0) + i))
    keys_from()
    A('L_fix_acc:')
    scores()
    for kt in range(2):
        for h in range(2):
            o.extend(sm_exp(0, kt, h) + [sm_cvt(0, kt, h, 0)])
    A('v_smfmac_f32_16x16x64_bf16 %s, %s, %s, v%d' % (vr(TS), ar(aSEL), vr(Pop(0, 0), 8), vIDX))
    tile(SRD_V)
    for t in range(12):
        for h in range(2):
            A('ds_read_b64_tr_b16 %s, v%d offset:%d' % (ar(OA + 4 * t + 2 * h, 2), va[t % 4], (t // 4) * 128 + h * 6144))
    A('s_waitcnt lgkmcnt(0)')
    for t in range(12):
        A('v_mfma_f32_16x16x32_bf16 %s, %s, %s, %s' % (Oq(0, t), ar(OA + 4 * t), vr(Pop(0, 0)), Oq(0, t)))
    keys_next('L_fix_acc')
    A('s_nop 7')
    A('v_add_f32 v%d, v%d, v%d' % (vX, TS, TS + 1))
    A('v_rcp_f32 v%d, v%d' % (vX, vX))
    for t in range(12):
        x = OV + 4 * t
        for i in range(4):
            A('v_mul_f32 v%d, v%d, v%d' % (x + i, x + i, vX))
        A('v_cvt_pk_bf16_f32 v%d, v%d, v%d' % (x, x, x + 1))
        A('v_cvt_pk_bf16_f32 v%d, v%d, v%d' % (x + 1, x + 2, x + 3))
        A('buffer_store_dwordx2 %s, v%d, s[%d:%d], s%d offen offset:%d' % (vr(x, 2), vG + 1, SRD_O, SRD_O + 3, sQn, t * 32))
    A('s_waitcnt vmcnt(0)')
    A('s_add_u32 s%d, s%d, 6144' % (sQn, sQn))
    A('s_add_u32 s%d, s%d, 1' % (sU, sU))
    A('s_cmp_lt_u32 s%d, s%d' % (sU, sNT))
    A('s_cbranch_scc1 L_fix_tile')
    A('s_cmp_lg_u32 s%d, 0' % sFlag)
    A('s_cbranch_scc1 L_fix_pass')
    A('s_branch L_done')
    return fix_hazards(o)


class Blk:
    def __init__(self, name, seq):
        self.name = name
        self.seq = seq


FINE = [50, 52, 54, 56, 58, 60, 88, 90, 92, 94, 96, 98, 100]


def prof_mark(k):
    return [I('s_memtime s[92:93]'), I('s_waitcnt lgkmcnt(0)'), I('s_sub_u32 s95, s92, s94'),
            I('s_add_u32 s%d, s%d, s95' % (50 + k, 50 + k)), I('s_mov_b32 s94, s92')]


def rt_mark(extra=0):
    vX = S(0, 0)
    return [I('v_mov_b32 v%d' % vX + ', s92'), I('s_lshl_b32 s95, s%d, 2' % sPn), I('s_add_u32 s95, s95, s98'), I('s_add_u32 s95, s95, %d' % extra),
            I('buffer_store_dword v%d' % vX + ', off, s[80:83], s95')]


def clone_prog(prog):
    m = {}
    for x in prog:
        y = Inst(x.text, tag=dict(x.tag) if isinstance(x.tag, dict) else x.tag, prio=x.prio, notbefore=x.notbefore, vm_id=x.vm_id)
        y.kind, y.reads, y.writes, y.floating = x.kind, set(x.reads), set(x.writes), x.floating
        m[id(x)] = y
    for x in prog:
        m[id(x)].after = [m[id(a)] for a in x.after if id(a) in m]
        if x.glue is not None:
            m[id(x)].glue = m[id(x.glue)]
    return [m[id(x)] for x in prog]


def search_schedule(p, hist, tries):
    import random
    best = None
    pend = v_reads(0, 0, 0, opt.vlead)
    for k in range(tries):
        q = clone_prog(p)
        s = schedule(q, history=hist, urgent_ok=False, jitter=None if k == 0 else (random.Random(1000 + k), 16 + 8 * (k % 8)))
        w, _ = insert_lgkm_waits(s, pending=pend)
        e = estimate(fix_hazards(w, history=hist) + w[:12])
        if best is None or e < best[0]:
            best = (e, s)
    return best[1]


def search_dense(p, hist):
    import random
    best = None
    pend = v_reads(0, 0, 0, opt.vlead) + v_reads(0, 0, 0, opt.vlead, 4)
    keep = asmlib.DENSE_M, asmlib.DENSE_W0, asmlib.DENSE_W
    for k in range(opt.tries_tr):
        rng = random.Random(77 + k)
        if k:
            asmlib.DENSE_M, asmlib.DENSE_W0, asmlib.DENSE_W = rng.choice((8, 16, 24, 40)), rng.choice((0, 0, 12, 24)), rng.choice((40, 80, 120))
            asmlib.DENSE_R = rng.choice(eval(opt.dr))
        s = schedule_dense(clone_prog(p), history=hist, verbose=opt.verbose and opt.tries_tr == 1,
                           jitter=(rng, rng.choice((8, 30, 60, 120))) if k else None)
        w, _ = insert_lgkm_waits(s, pending=pend)
        e = estimate(fix_hazards(merge_waits(w), history=hist))
        for x in s:
            if isinstance(x.tag, dict) and 'lgkm' in x.tag:
                x.tag = {'need': x.tag['need']}
                x.text = 's_waitcnt vmcnt(0)'
        if best is None or e < best[0]:
            best = (e, s)
    asmlib.DENSE_M, asmlib.DENSE_W0, asmlib.DENSE_W = keep
    asmlib.DENSE_R = 0
    return best[1]


def bc_candidate(T, Tn, k, hist=()):
    import random
    rng = random.Random(4000 + k)
    keep = (opt.lead, opt.bc_extra, opt.c_lead, asmlib.DENSE_M, asmlib.DENSE_W0, asmlib.DENSE_W, asmlib.DENSE_R)
    opt.lead, opt.bc_extra, opt.c_lead = rng.choice((1, 2, 3, 4)), rng.choice((0, 0, 4, 6, 10)), rng.choice((0, 4, 8))
    asmlib.DENSE_M, asmlib.DENSE_W0, asmlib.DENSE_W = rng.choice((8, 16, 24, 40)), rng.choice((0, 0, 12, 24)), rng.choice((40, 80, 120))
    asmlib.DENSE_R = rng.choice((0, 60, 120, 240))
    asmlib.LDS_OCC, asmlib.LDS_LAT = opt.lds_occ_tr, opt.lds_lat_tr
    try:
        s = schedule_dense(phase_BC(T, Tn), history=list(hist), jitter=(rng, rng.choice((1, 8, 30, 60, 120))))
    except (AssertionError, ValueError):
        s = None
    opt.lead, opt.bc_extra, opt.c_lead, asmlib.DENSE_M, asmlib.DENSE_W0, asmlib.DENSE_W, asmlib.DENSE_R = keep
    asmlib.LDS_LAT = opt.lds_lat
    return s


def bc_score(a):
    s = bc_candidate(*a)
    if s is None:
        return (1 << 30, a[2])
    w, _ = insert_lgkm_waits(s, pending=v_reads(0, 0, 0, opt.vlead, 4))
    return (estimate(fix_hazards(merge_waits(w))), a[2])


def best_bc(T, Tn):
    known = dict(x.split(':') for x in opt.bc_seeds.split(',') if x)
    if '%d%d' % (T, Tn) in known:
        return int(known['%d%d' % (T, Tn)])
    import multiprocessing
    with multiprocessing.Pool(8) as pool:
        res = sorted(pool.map(bc_score, [(T, Tn, k) for k in range(opt.big)]))
    print('best B+C schedules %d%d:' % (T, Tn), res[:12], file=sys.stderr)
    return res[0][1]


def chain_blocks(parts, tries=1, occ=0):
    out = []
    asmlib.LDS_OCC = occ
    for part in parts:
        kind, p = part[0], part[1]
        if kind == 'b':
            out += bc_candidate(p[0], p[1], best_bc(*p), out[-24:])
            if opt.prof:
                out += prof_mark(part[2])
        elif kind == 'd':
            asmlib.LDS_LAT = opt.lds_lat_tr
            asmlib.CLUSTER = opt.glue_tr
            out += search_dense(p, out[-24:])
            asmlib.LDS_LAT = opt.lds_lat
            if opt.prof and len(part) > 2:
                out += prof_mark(part[2])
        elif kind == 's':
            if tries > 1:
                out += search_schedule(p, out[-24:], tries)
            else:
                out += schedule(p, history=out[-24:], verbose=opt.verbose, urgent_ok=False)
            if opt.prof and len(part) > 2:
                out += prof_mark(part[2])
        else:
            out += p
    return out


def NW():
    return 2 if opt.wshift else 1


def build():
    pro = []
    prologue(pro)
    blocks = {'first': Blk('first', start_pre() + [I('s_cmp_eq_u32 s%d, 0' % sT5), I('s_cbranch_scc1 L_start4')])}
    for T in (5, 4):
        nm = 'start%d' % T
        run_up = [('d', phase_S2(T))] if opt.start2 else [('d', phase_S(T)), ('s', phase_iter(T, 1))]
        parts = [('r', [I('L_%s:' % nm)])] + run_up + [('s', phase_iter(T, 2)),
                 ('r', (prof_mark(0) if opt.prof else []) + [I('s_mov_b32 s%d, 0' % sTrip), I('s_branch L_loop%d' % T)])]
        blocks[nm] = Blk(nm, chain_blocks(parts, 1, opt.lds_occ_tr))
        for w in range(NW()):
            nm = 'loop%dw%d' % (T, w)
            head = []
            if w == 0:
                head = [I('L_loop%d:' % T)]
                if NW() == 2:
                    head += [I('s_bitcmp1_b32 s%d, %d' % (sW, opt.wbit)), I('s_cbranch_scc1 L_loop%dw1' % T)]
            parts = [('r', head + [I('.p2align 6'), I('L_%s:' % nm)])]
            for j in range(3, 9):
                tail, vtail = [], []
                if j == 8:
                    tail = [I('s_add_u32 s%d, s%d, 1' % (sTrip, sTrip)), I('s_cmp_lt_u32 s%d, 2' % sTrip)]
                    vtail = [I('v_add_u32 v%d, 9216, v%d' % (vPR, vPR))]
                parts.append(('s', phase_iter(T, j, qo=((j - 3) // 2,), tail=tail, vtail=vtail, shift=w * opt.wshift, loop=True)))
                if opt.pad and j < 8:
                    parts.append(('r', [I('s_nop 15') for _ in range(opt.pad)]))
            ex = [I('s_cbranch_scc1 L_%s' % nm)] + (prof_mark(1 if T == 5 else 5) + rt_mark() if opt.prof else [])
            ex += [I('s_cmp_ge_u32 s%d, %d' % (sPn, NPASS)), I('s_cbranch_scc1 L_end%d' % T),
                   I('s_cmp_eq_u32 s%d, 0' % sT5), I('s_cbranch_scc1 L_tr%d4' % T), I('s_branch L_tr%d5' % T)]
            parts.append(('r', ex))
            blocks[nm] = Blk(nm, chain_blocks(parts, opt.tries, opt.lds_occ))
        nm = 'end%d' % T
        parts = [('r', [I('L_%s:' % nm)]), ('d', phase_A(T, 0, True), 2), ('d', phase_B(T, 0, True), 3), ('r', [I('s_branch L_fin')])]
        if opt.end2:
            parts[1:3] = [('d', phase_E(T), 3)]
        elif opt.endm:
            parts[1:3] = [('d', parts[1][1] + parts[2][1], 3)]
        keep = asmlib.STGAP, asmlib.STW, asmlib.LDSW, asmlib.LDSW2
        asmlib.STGAP, asmlib.STW, asmlib.LDSW, asmlib.LDSW2 = [int(x) for x in opt.endp.split(',')]
        blocks[nm] = Blk(nm, chain_blocks(parts, 1, opt.lds_occ_tr))
        asmlib.STGAP, asmlib.STW, asmlib.LDSW, asmlib.LDSW2 = keep
    for T, Tn in ((5, 4), (4, 5), (4, 4), (5, 5)):
        nm = 'tr%d%d' % (T, Tn)
        parts = [('r', [I('L_%s:' % nm)]), ('d', phase_A(T, Tn, False), 2),
                 ('b', (T, Tn), 3) if opt.big or opt.bc_seeds else ('d', phase_BC(T, Tn), 3),
                 ('s', phase_iter(Tn, 1, 16)), ('s', phase_iter(Tn, 2, 16)),
                 ('r', (prof_mark(4) + rt_mark(28) if opt.prof else []) + [I('s_mov_b32 s%d, 0' % sTrip), I('s_branch L_loop%d' % Tn)])]
        blocks[nm] = Blk(nm, chain_blocks(parts, 1, opt.lds_occ_tr))
    asmlib.LDS_OCC = 0

    canon = v_reads(0, 0, 0, opt.vlead)
    for nm, blk in blocks.items():
        blk.seq, _ = insert_lgkm_waits(blk.seq, pending=[] if nm.startswith(('start', 'first')) else canon)
        blk.seq = merge_waits(blk.seq)
    l5 = ['loop5w%d' % w for w in range(NW())]
    l4 = ['loop4w%d' % w for w in range(NW())]
    preds = {'first': [], 'start5': ['first'], 'start4': ['first'], 'end5': l5, 'end4': l4, 'tr54': l5, 'tr45': l4, 'tr44': l4, 'tr55': l5}
    for x in l5:
        preds[x] = ['start5', x, 'tr45', 'tr55']
    for x in l4:
        preds[x] = ['start4', x, 'tr54', 'tr44']
    for nm, blk in blocks.items():
        for p in preds[nm] or [None]:
            hist = blocks[p].seq[-30:] if p else pro[-30:]
            blk.seq = fix_hazards(blk.seq, history=list(hist))
    problems = []
    for nm, blk in blocks.items():
        for p in preds[nm]:
            cat = blocks[p].seq + blk.seq
            problems += check_hazards(cat, p + '+' + nm)
            problems += verify_lgkm(cat, p + '+' + nm)
    if problems:
        for p in problems[:40]:
            print('PROBLEM', p, file=sys.stderr)
        raise SystemExit('hazards found')
    resolve_vm(blocks)
    if NW() == 1 and opt.onerole < 0 and not opt.nobar:
        verify_rings(blocks)
    if opt.fine:
        for nm in opt.fine.split(','):
            blk = blocks[nm]
            seq = blk.seq
            st = asmlib.new_state()
            tm = []
            for c in seq:
                t = st['slot']
                if c.kind not in ('label', 'directive'):
                    t = asmlib.issue_time(None, None, c, st)
                    asmlib.commit(c, t, st)
                tm.append(t)
            lo, hi = opt.fine_lo, min(opt.fine_hi, tm[-1])
            out = []
            k = 0
            marks = []
            for i, c in enumerate(seq if opt.fine_vm else []):
                out.append(c)
                if (i == 1 or c.kind == 'barrier' or (c.kind == 'wait' and isinstance(c.tag, dict)) or i == len(seq) - 2) and k < len(FINE):
                    out.append(I('s_memtime s[%d:%d]' % (FINE[k], FINE[k] + 1)))
                    marks.append(tm[i])
                    k += 1
            if opt.fine_vm:
                seq = []
            for i, c in enumerate(seq if opt.fine_bar else []):
                isw = c.kind == 'wait' and isinstance(c.tag, dict) and any(x.kind == 'barrier' for x in seq[i + 1:i + 4])
                if (isw or i == 1) and k < len(FINE):
                    out.append(I('s_memtime s[%d:%d]' % (FINE[k], FINE[k] + 1)))
                    marks.append(tm[i])
                    k += 1
                out.append(c)
                if (c.kind == 'barrier' or i == len(seq) - 2) and k < len(FINE):
                    out.append(I('s_memtime s[%d:%d]' % (FINE[k], FINE[k] + 1)))
                    marks.append(tm[i])
                    k += 1
            while opt.fine_bar and k < len(FINE):
                out.insert(len(out) - 1, I('s_memtime s[%d:%d]' % (FINE[k], FINE[k] + 1)))
                k += 1
            for i, c in enumerate(seq if not opt.fine_bar else []):
                out.append(c)
                if k < len(FINE) and tm[i] >= lo + (hi - lo) * k / (len(FINE) - 1) - 1 and (c.kind == 'mfma' or i == len(seq) - 2 or
                                                                                       tm[i] > lo + (hi - lo) * k / (len(FINE) - 1) + 40):
                    out.append(I('s_memtime s[%d:%d]' % (FINE[k], FINE[k] + 1)))
                    marks.append(tm[i])
                    k += 1
            blk.seq = out
            print('fine %s model:' % nm, ' '.join('%5d' % (b - a) for a, b in zip(marks, marks[1:])), ' from', marks[0], file=sys.stderr)
    if opt.around:
        nm, rx, first, span = opt.around.split(':')
        out = []
        k = n = 0
        left = -1
        for x in blocks[nm].seq:
            if left < 0 and re.match(rx, x.text):
                n += 1
                if n > int(first) and k < 12:
                    out.append(I('s_memtime s[%d:%d]' % (FINE[k], FINE[k] + 1)))
                    left = int(span)
                    print('around:', end=' ', file=sys.stderr)
            out.append(x)
            if left >= 0:
                print(x.text.split('_bf16')[0][:24], end=' | ', file=sys.stderr)
                left -= 1
                if left < 0:
                    out.append(I('s_memtime s[%d:%d]' % (FINE[k + 1], FINE[k + 1] + 1)))
                    k += 2
                    print(file=sys.stderr)
        blocks[nm].seq = out
        opt.fine = 'x'
    for pat in [x for x in opt.drop.split(',') if x]:
        for nm, blk in blocks.items():
            blk.seq = [x for x in blk.seq if not re.match(pat, x.text)]
    if opt.align:
        for nm, blk in blocks.items():
            blk.seq = [I('.p2align 3')] + align8(blk.seq, nm if opt.verbose else '')
    L = [text_of(fix_hazards(pro))]
    for nm in ['first', 'start5', 'start4'] + l5 + ['tr54', 'tr55'] + l4 + ['tr45', 'tr44', 'end5', 'end4']:
        L.append(text_of(blocks[nm].seq))
        if opt.verbose:
            s = blocks[nm].seq
            print('%-7s %5d instrs, %4d mfma, est %6d cycles' % (nm, len(s), sum(1 for x in s if x.kind == 'mfma'), estimate(s)), file=sys.stderr)
    fin = [I('L_fin:'), I('s_waitcnt vmcnt(0)')]
    if opt.stamps:
        fin += stamp_code()
    fin.append(I('L_stamped:'))
    if opt.force:
        fin.append(I('s_mov_b32 s%d, 0x3f' % sFlag))
    fin += [I('s_cmp_lg_u32 s%d, 0' % sFlag), I('s_cbranch_scc1 L_fix'), I('L_done:'), I('L_end:'), I('s_endpgm')]
    L.append(text_of(fin))
    L.append(text_of(fixup_code()))
    L.append('L_codeend:')
    return '\n'.join(L)


def stamp_code():
    o = []
    A = lambda t: o.append(I(t))
    A('s_memrealtime s[76:77]')
    A('s_memtime s[78:79]')
    A('s_waitcnt lgkmcnt(0)')
    if opt.fine:
        A('s_lshl_b32 s68, s2, 8')
        A('s_lshl_b32 s67, s%d, 6' % sW)
        A('s_add_u32 s68, s68, s67')
        A('s_add_u32 s68, s68, 0x30000')
        A('v_mov_b32 v80, s68')
        for k, r in enumerate(FINE):
            A('v_mov_b32 v82, s%d' % r)
            A('buffer_store_dword v82, v80, s[80:83], 0 offen offset:%d' % (4 * k))
            A('s_nop 1')
    A('s_cmp_eq_u32 s%d, 0' % sW)
    A('s_cbranch_scc0 L_stamped')
    A('s_lshl_b32 s68, s2, 6')
    A('v_mov_b32 v80, s68')
    for j, sr in enumerate((74, 72, 74, 72, 78, 76)):
        A('v_mov_b32 v82, s%d' % sr)
        A('v_mov_b32 v83, s%d' % (sr + 1))
        A('buffer_store_dwordx2 v[82:83], v80, s[80:83], 0 offen offset:%d' % (8 * j))
        A('s_nop 1')
    if opt.prof:
        A('s_lshl_b32 s68, s2, 5')
        A('s_add_u32 s68, s68, 0x10000')
        A('v_mov_b32 v80, s68')
        for k in range(6):
            A('v_mov_b32 v82, s%d' % (50 + k))
            A('buffer_store_dword v82, v80, s[80:83], 0 offen offset:%d' % (4 * k))
            A('s_nop 1')
    A('s_waitcnt vmcnt(0)')
    return o


def resolve_vm(blocks):
    waits = {}
    progs = set()
    for j in range(3):
        for w in range(4):
            ts = []
            for n in range(NPASS):
                role = (32 * n + j) * (1 + opt.rev) % 3 if opt.onerole < 0 else opt.onerole
                ts.append(5 if role == 0 or (role == 1 and w == 0) else 4)
            progs.add((tuple(ts), ((w >> opt.wbit) & 1) if NW() == 2 else 0))
    for Ts, wv in sorted(progs):
        trace = [('first', 0, -1, 0), ('start%d' % Ts[0], 0, -1, 0)]
        for p in range(NPASS):
            for k in range(2):
                trace.append(('loop%dw%d' % (Ts[p], wv), 16 * p + 6 * k, p, 3 * k))
            trace.append(('tr%d%d' % (Ts[p], Ts[p + 1]) if p < NPASS - 1 else 'end%d' % Ts[p], 16 * p, p, 0))
        q = []
        waited = set()
        for nm, base, p, gb in trace:
            def res(i):
                if i[0] in ('k', 'v'):
                    n = base + i[1]
                    if nm.startswith('loop') and n >= 16 * p + 16:
                        n += 1
                    return (i[0], n)
                if i[0] in ('qg', 'code'):
                    return (i[0], gb + i[1], p)
                return tuple(i) + (p,)
            for c in blocks[nm].seq:
                if c.vm_id is not None:
                    if res(c.vm_id) in waited:
                        raise SystemExit('vm id %s issued after a wait that covers it (%s in %s)' % (res(c.vm_id), c.text, nm))
                    q.append(res(c.vm_id))
                if c.kind == 'wait' and isinstance(c.tag, dict) and 'need' in c.tag:
                    need = [res(i) for i in c.tag['need']]
                    waited.update(need)
                    idx = -1
                    for n_ in need:
                        where = [j for j, x in enumerate(q[-200:]) if x == n_]
                        if not where:
                            raise SystemExit('vm id %s never issued (%s in %s)' % (n_, c.text, nm))
                        idx = max(idx, where[-1])
                    cnt = len(q[-200:]) - idx - 1
                    waits.setdefault(id(c), [c, 63])
                    waits[id(c)][1] = min(waits[id(c)][1], cnt)
    for c, n in waits.values():
        c.text = 's_waitcnt vmcnt(%d)' % n + (' lgkmcnt(%d)' % c.tag['lgkm'] if 'lgkm' in c.tag else '')


def verify_rings(blocks):
    for j in range(3):
        ev = []
        for w in (0, 1):
            roles = [(32 * n + j) * (1 + opt.rev) % 3 for n in range(NPASS)]
            Ts = [5 if r == 0 or (r == 1 and w == 0) else 4 for r in roles]
            trace = ['first', 'start%d' % Ts[0]]
            for p in range(NPASS):
                trace += ['loop%dw0' % Ts[p]] * 2 + ['tr%d%d' % (Ts[p], Ts[p + 1]) if p < NPASS - 1 else 'end%d' % Ts[p]]
            epoch = 0
            m0 = None
            vm, ds = [], []
            gen = {}
            fills, landed, first_read, read_done = {}, {}, {}, {}
            for nm in trace:
                for c in blocks[nm].seq:
                    mm = re.match(r's_add_u32 m0, s(\d+), (\d+)', c.text)
                    if mm:
                        r, imm = int(mm.group(1)), int(mm.group(2))
                        m0 = ('k', imm // TILE) if r == sW3 else ('v', imm // TILE) if r == sW3V else None
                    if c.kind == 'barrier':
                        epoch += 1
                    elif c.kind in ('dma', 'vst', 'vld'):
                        key = None
                        if c.kind == 'dma' and m0 is not None:
                            if 'offset:0 ' in c.text + ' ':
                                gen[m0] = gen.get(m0, 0) + 1
                                fills[m0 + (gen[m0],)] = epoch
                            key = m0 + (gen[m0],)
                        vm.append(key)
                    elif c.kind == 'ds':
                        key = None
                        mm = re.match(r'ds_read\S+ \S+ v(\d+) offset:(\d+)', c.text)
                        if mm and int(mm.group(1)) in vKA + vVA:
                            sl = ('k' if int(mm.group(1)) in vKA else 'v', int(mm.group(2)) // TILE)
                            key = sl + (gen[sl],)
                            first_read.setdefault(key, epoch)
                            read_done[key] = None
                        ds.append(key)
                    elif c.kind == 'wait':
                        for q, name, done in ((vm, 'vmcnt', landed), (ds, 'lgkmcnt', read_done)):
                            mm = re.search(name + r'\((\d+)\)', c.text)
                            if mm:
                                n = int(mm.group(1))
                                gone, q[:] = q[:max(0, len(q) - n)], q[max(0, len(q) - n):]
                                for key in gone:
                                    if key is not None and key not in q:
                                        done[key] = epoch
            ev.append((fills, landed, first_read, read_done, epoch))
        assert ev[0][4] == ev[1][4], 'barrier counts differ'
        for a in ev:
            for b in ev:
                assert sorted(a[0]) == sorted(b[0])
                for key, e in a[2].items():
                    assert b[1].get(key, 1 << 30) < e, ('read too early', j, key, e, b[1].get(key))
                for key, e in a[0].items():
                    old = key[:2] + (key[2] - 1,)
                    if old in b[3]:
                        assert b[3][old] is not None and b[3][old] < e, ('refilled too early', j, key, e, b[3][old])
        for key in ev[0][0]:
            assert key in ev[0][2] or key[2] == max(k[2] for k in ev[0][0] if k[:2] == key[:2]), ('never read', key)


def late_addr():
    o = []
    A = lambda t: o.append(I(t))
    ln, t0, t1, t3 = vX, TMP, TMP + 1, TMP + 3
    A('v_and_b32 v%d, 15, v%d' % (t0, ln))
    A('v_lshrrev_b32 v%d, 4, v%d' % (t1, ln))
    A('v_mul_u32_u24 v%d, 384, v%d' % (vKA[0], t0))
    A('v_and_b32 v%d, 6, v%d' % (t3, t0))
    A('v_xor_b32 v%d, v%d, v%d' % (t3, t3, t1))
    A('v_lshl_add_u32 v%d, v%d, 4, v%d' % (vKA[0], t3, vKA[0]))
    A('v_xor_b32 v%d, 64, v%d' % (vKA[1], vKA[0]))
    for m in range(2):
        A('v_add_u32 v%d, s%d, v%d' % (vQA[m], sQOw, vKA[m]))
    A('v_lshrrev_b32 v%d, 2, v%d' % (t0, ln))
    A('v_mul_u32_u24 v%d, 384, v%d' % (vVA[0], t0))
    A('v_and_b32 v%d, 6, v%d' % (t0, t0))
    A('v_bfe_u32 v%d, v%d, 1, 1' % (t3, ln))
    A('v_xor_b32 v%d, v%d, v%d' % (t0, t0, t3))
    A('v_lshl_add_u32 v%d, v%d, 4, v%d' % (vVA[0], t0, vVA[0]))
    A('v_and_b32 v%d, 1, v%d' % (t3, ln))
    A('v_lshl_add_u32 v%d, v%d, 3, v%d' % (vVA[0], t3, vVA[0]))
    A('v_add_u32 v%d, %d, v%d' % (vVA[0], VBASE, vVA[0]))
    for m in range(1, 4):
        A('v_xor_b32 v%d, %d, v%d' % (vVA[m], 32 * m, vVA[0]))
    A('v_lshrrev_b32 v%d, 3, v%d' % (t0, ln))
    A('v_and_b32 v%d, 7, v%d' % (t1, ln))
    A('v_xor_b32 v%d, v%d, v%d' % (t3, t1, t0))
    A('v_lshl_add_u32 v%d, v%d, 7, s%d' % (vPR, t0, sQOw))
    A('v_lshl_add_u32 v%d, v%d, 4, v%d' % (vPR, t3, vPR))
    A('v_mul_u32_u24 v%d, 384, v%d' % (vOG, t0))
    A('v_lshl_add_u32 v%d, v%d, 4, v%d' % (vOG, t1, vOG))
    fin = [I('v_and_b32 v%d, 7, v%d' % (t1, ln)), I('v_lshrrev_b32 v%d, 5, v%d' % (t0, ln)), I('v_xor_b32 v%d, v%d, v%d' % (t1, t1, t0)),
           I('v_and_b32 v%d, 15, v%d' % (t0, ln)), I('v_lshl_add_u32 v%d, v%d, 7, s%d' % (t0, t0, sQOw)),
           I('v_lshl_add_u32 v%d, v%d, 4, v%d' % (t0, t1, t0)), I('v_bfe_u32 v%d, v%d, 4, 1' % (t1, ln)),
           I('v_lshl_add_u32 v%d, v%d, 3, v%d' % (vOW, t1, t0))]
    A('v_lshrrev_b32 v%d, 4, v%d' % (t0, ln))
    A('v_xor_b32 v%d, v%d, v%d' % (t0, t0, ln))
    A('v_bfe_u32 v%d, v%d, 1, 1' % (t0, t0))
    A('v_subrev_u32 v%d, 1, v%d' % (t0, t0))
    A('v_and_b32 v%d, 0x3f803f80, v%d' % (t0, t0))
    for i in range(4):
        A('v_accvgpr_write_b32 a%d, v%d' % (aSEL + i, t0))
    A('v_and_b32 v%d, 1, v%d' % (t0, ln))
    A('v_mul_u32_u24 v%d, 0xaaaa, v%d' % (t0, t0))
    A('v_add_u32 v%d, 0x4444, v%d' % (vIDX, t0))
    return o + fin


def code_touch():
    o = []
    A = lambda t: o.append(I(t))
    ln, t0 = vX, TMP + 5
    A('s_getpc_b64 s[%d:%d]' % (sPC, sPC + 1))
    A('s_mul_i32 s%d, s%d, %d' % (sT0, sJ, opt.ipre * 128))
    A('s_mul_i32 s%d, s%d, %d' % (sCode, sW, opt.ipre * 32))
    A('s_add_u32 s%d, s%d, s%d' % (sCode, sCode, sT0))
    A('v_min_u32 v%d, %d, v%d' % (t0, opt.ipre - 1, ln))
    A('v_lshlrev_b32 v%d, 7, v%d' % (t0, t0))
    A('v_add_u32 v%d, s%d, v%d' % (t0, sT0, t0))
    A('v_min_u32 v%d, L_codeend-L_first-4, v%d' % (t0, t0))
    A('s_cmp_lg_u32 s%d, 0' % sW)
    A('s_cbranch_scc1 L_nopre')
    A('global_load_dword v%d, v%d, s[%d:%d]' % (O2, t0, sPC, sPC + 1))
    A('L_nopre:')
    return o


def code_refresh(t, vX=S(0, 0)):
    n = opt.ipre // 4
    o = [I('v_mbcnt_lo_u32_b32 v%d, -1, 0' % vX), I('v_mbcnt_hi_u32_b32 v%d, -1, v%d' % (vX, vX)),
         I('v_min_u32 v%d, %d, v%d' % (vX, n - 1, vX)), I('v_lshl_add_u32 v%d, v%d, 7, s%d' % (vX, vX, sCode)),
         I('v_min_u32 v%d, L_codeend-L_first-4, v%d' % (vX, vX)),
         I('global_load_dword a%d, v%d, s[%d:%d]' % (aRB, vX, sPC, sPC + 1), vm_id=('code', 0))]
    o[-1].notbefore = t
    o[-1].prio = -100000
    return o


def prologue(pro):
    A = lambda t, **kw: pro.append(I(t, **kw))
    A('s_cmp_ge_u32 s2, 256')
    A('s_cbranch_scc1 L_end')
    A('s_load_dwordx4 s[84:87], s[0:1], 0')
    A('s_load_dwordx4 s[88:91], s[0:1], 16')
    if opt.stamps:
        A('s_load_dwordx2 s[70:71], s[0:1], 40')
        A('s_memrealtime s[72:73]')
        A('s_memtime s[74:75]')
    ln, t0, t1, t2 = vX, TMP, TMP + 1, TMP + 2
    A('v_lshrrev_b32 v%d, 6, v0' % t0)
    A('v_and_b32 v%d, 63, v0' % ln)
    A('v_readfirstlane_b32 s%d, v%d' % (sW, t0))
    A('s_lshr_b32 s%d, s2, 3' % sJ)
    if opt.ipre and not opt.ilate:
        pro += code_touch()
    A('v_lshrrev_b32 v%d, 3, v%d' % (t0, ln))
    A('v_and_b32 v%d, 7, v%d' % (t2, ln))
    for j in range(3):
        A('v_add_u32 v%d, %d, v%d' % (t1, 8 * j, t0))
        A('v_mul_u32_u24 v%d, 43, v%d' % (t1, t1))
        A('v_lshrrev_b32 v%d, 7, v%d' % (t1, t1))
        A('v_and_b32 v%d, 6, v%d' % (t1, t1))
        A('v_xor_b32 v%d, v%d, v%d' % (t1, t1, t2))
        A('v_lshlrev_b32 v%d, 4, v%d' % (t1, t1))
        A('v_lshl_add_u32 v%d, v%d, 7, v%d' % (vD[j], t0, t1))
    A('s_mov_b32 s%d, 0x%x' % (sThr, opt.thr))
    A('s_mov_b32 s%d, 0x3dd53b95' % sC)
    A('s_mov_b32 s%d, 0' % sFlag)
    A('s_mov_b32 s%d, 1' % sBit)
    A('s_and_b32 s%d, s2, 7' % sT0)
    A('s_lshl_b32 s%d, s%d, 6' % (sHead0, sT0))
    A('s_mul_i32 s%d, s%d, 3072' % (sW3, sW))
    A('s_add_u32 s%d, s%d, %d' % (sW3V, sW3, VBASE))
    A('s_mul_i32 s%d, s%d, %d' % (sQOw, sW, QOW))
    A('s_add_u32 s%d, s%d, %d' % (sQOw, sQOw, QOBASE))
    A('s_mov_b32 s%d, 0' % sPn)
    pro += item_calc(sPn)
    A('s_add_u32 s%d, s%d, s%d' % (sOffK, sKV, sW3))
    A('s_mov_b32 s%d, s%d' % (sOffV, sOffK))
    A('s_waitcnt lgkmcnt(0)')
    for srd, p, n in ((SRD_K, 86, KBYTES), (SRD_Q, 84, QBYTES if not opt.noq else 0), (SRD_V, 88, KBYTES),
                      (SRD_O, 90, QBYTES if not opt.nost else 0)):
        A('s_mov_b32 s%d, s%d' % (srd, p))
        A('s_and_b32 s%d, s%d, 0xffff' % (srd + 1, p + 1))
        A('s_mov_b32 s%d, %d' % (srd + 2, n))
        A('s_mov_b32 s%d, 0x20000' % (srd + 3))
    if opt.stamps:
        A('s_mov_b32 s80, s70')
        A('s_and_b32 s81, s71, 0xffff')
        A('s_mov_b32 s82, 0x100000')
        A('s_mov_b32 s83, 0x20000')
    if opt.prof:
        for k in range(6):
            A('s_mov_b32 s%d, 0' % (50 + k))
        A('s_mov_b32 s94, s74')
        A('s_lshl_b32 s98, s2, 8')
        A('s_add_u32 s98, s98, 0x20000')
        A('s_lshl_b32 s99, s%d, 6' % sW)
        A('s_add_u32 s98, s98, s99')


HEADER = """; Kernarg layout (48 bytes): q, k, v, out, debug, ws
; @launch grid=(256,1,1) block=(256,1,1) lds=%d
.amdgcn_target "amdgcn-amd-amdhsa--gfx950"
.text
.globl %s
.p2align 8
.type %s,@function
%s:
"""
FOOTER = """
.section .rodata,"a"
.p2align 6
.amdhsa_kernel %s
  .amdhsa_next_free_vgpr 512
  .amdhsa_next_free_sgpr 102
  .amdhsa_accum_offset 256
  .amdhsa_group_segment_fixed_size 0
  .amdhsa_kernarg_size 48
  .amdhsa_user_sgpr_count 2
  .amdhsa_user_sgpr_kernarg_segment_ptr 1
  .amdhsa_system_sgpr_workgroup_id_x 1
.end_amdhsa_kernel
"""


def main():
    ap = argparse.ArgumentParser()
    ap.add_argument('-o', default='standalone__gqa_softmax__near_ridge.s')
    ap.add_argument('--set', action='append', default=[])
    a = ap.parse_args()
    for kv in a.set:
        k, v = kv.split('=', 1)
        cur = getattr(opt, k)
        if isinstance(cur, bool):
            v = v not in ('0', 'False', '')
        elif isinstance(cur, int):
            v = int(v, 0)
        elif isinstance(cur, float):
            v = float(v)
        setattr(opt, k, v)
    asmlib.LDS_LAT = opt.lds_lat
    asmlib.LDSW = opt.ldsw
    asmlib.LDSW2 = opt.ldsw2
    asmlib.STW = opt.stw
    asmlib.DMAD = opt.dmad
    asmlib.BAR = opt.bar
    asmlib.STWW = opt.stww
    asmlib.DMAW, asmlib.DMAV = opt.dmaw, opt.dmav
    asmlib.DENSE_M, asmlib.DENSE_W0, asmlib.DENSE_W = opt.dm, opt.dw0, opt.dw
    asmlib.LDS_Q = opt.lds_q
    asmlib.STGAP = opt.stgap
    asmlib.WAIT_LAT = opt.wait_lat
    body = build()
    if opt.short:
        body = '\n'.join(l.strip().replace(', ', ',') for l in body.split('\n'))
    txt = HEADER % (LDS_BYTES, NAME, NAME, NAME) + body + FOOTER % NAME
    open(a.o, 'w').write(txt)
    print('wrote %s (%d bytes)' % (a.o, len(txt)), file=sys.stderr)


if __name__ == '__main__':
    main()
```
